```python
import torch

def _softmax(x, axis=-1):
    return torch.softmax(x, dim=axis)
def _gelu(x):
    return torch.nn.functional.gelu(x, approximate="tanh")
def _silu(x):
    return torch.nn.functional.silu(x)
def _sigmoid(x):
    return torch.sigmoid(x)
def _layernorm(x, axis=-1, eps=1e-5):
    m = x.mean(dim=axis, keepdim=True)
    v = x.var(dim=axis, keepdim=True, unbiased=False)
    return (x - m) / torch.sqrt(v + eps)
def _scatter_add(tgt, idx, src, axis=0):
    return tgt.clone().index_add_(axis, idx, src)
def _segment_sum(src, seg, n):
    out = torch.zeros((n,) + src.shape[1:], dtype=src.dtype)
    return out.index_add_(0, seg, src)
def _pad(x, pw):
    flat = tuple(v for pair in reversed(pw) for v in pair)
    return torch.nn.functional.pad(x, flat)

kernel_name = 'gated_mix__ssm_conv_s4d__grouped_kv_mqa__prompt'

def setup_inputs():

    _w = (lambda a: (lambda t: t.to(torch.bfloat16) if t.is_floating_point() else t)(torch.as_tensor(a)))
    def _A_setup():
        Bsz, L, D, N = 1, 2048, 640, 128
        return {
            "u": _w((lambda *s: torch.randn(*s, dtype=torch.bfloat16) * 0.05)(Bsz, L, D)),
            "log_A_real": _w((lambda *s: torch.randn(*s, dtype=torch.bfloat16) * 6.4)(D, N) * 0.5),
            "A_imag": _w((lambda *s: torch.randn(*s, dtype=torch.bfloat16) * 0.05)(D, N) * 3.14),
            "C_real": _w((lambda *s: torch.randn(*s, dtype=torch.bfloat16) * 0.05)(D, N) / N ** 0.5),
            "C_imag": _w((lambda *s: torch.randn(*s, dtype=torch.bfloat16) * 0.05)(D, N) / N ** 0.5),
            "log_dt": _w((lambda *s: torch.randn(*s, dtype=torch.bfloat16) * 0.05)(D) * 0.5 - 4.0),
            "D_skip": _w((lambda *s: torch.randn(*s, dtype=torch.bfloat16) * 0.05)(D)),
        }
    _A_in = _A_setup()

    def _B_setup():
        B, S, D, H = 1, 2048, 640, 32
        Dh = D // H
        return {
            "x": _w((lambda *s: torch.randn(*s, dtype=torch.bfloat16) * 0.05)(B, S, D)),
            "wq": _w((lambda *s: torch.randn(*s, dtype=torch.bfloat16) * 0.8)(D, H * Dh)),
            "wk": _w((lambda *s: torch.randn(*s, dtype=torch.bfloat16) * 0.8)(D, Dh)),
            "wv": _w((lambda *s: torch.randn(*s, dtype=torch.bfloat16) * 0.05)(D, Dh)),
            "wo": _w((lambda *s: torch.randn(*s, dtype=torch.bfloat16) * 0.05)(H * Dh, D)),
        }
    _B_in = _B_setup()

    return {
        "A_u": _A_in["u"],
        "A_log_A_real": _A_in["log_A_real"],
        "A_A_imag": _A_in["A_imag"],
        "A_C_real": _A_in["C_real"],
        "A_C_imag": _A_in["C_imag"],
        "A_log_dt": _A_in["log_dt"],
        "A_D_skip": _A_in["D_skip"],
        "B_x": _B_in["x"],
        "B_wq": _B_in["wq"],
        "B_wk": _B_in["wk"],
        "B_wv": _B_in["wv"],
        "B_wo": _B_in["wo"],
        "gate_w": _w((lambda *s: torch.randn(*s, dtype=torch.bfloat16) * 0.05)(640) * 16.0),
    }

def reference(A_u, A_log_A_real, A_A_imag, A_C_real, A_C_imag, A_log_dt, A_D_skip, B_x, B_wq, B_wk, B_wv, B_wo, gate_w):
    def _A_ref(u, log_A_real, A_imag, C_real, C_imag, log_dt, D_skip):
        L = u.shape[1]
        dt = torch.exp(log_dt)
        A = -torch.exp(log_A_real) + 1j * A_imag
        C = (C_real + 1j * C_imag) * dt[:, None]
        pos = (lambda x, dt: x.to(dt))(torch.arange(L), log_dt.dtype)
        P = torch.exp((A * dt[:, None])[:, :, None] * pos[None, None, :])
        K = 2.0 * torch.einsum("dn,dnl->dl", C, P).real
        L2 = 2 * L
        u_t = (lambda x, *d: x.permute(*d))(u, 0, 2, 1)
        Kf = (lambda x, *a, **k: torch.fft.rfft(x.float(), *a, **k))(K, L2)
        Uf = (lambda x, *a, **k: torch.fft.rfft(x.float(), *a, **k))(u_t, L2)
        y = (lambda x, *a, **k: torch.fft.irfft(x, *a, **k).to(torch.bfloat16))(Uf * Kf[None, :, :], L2)[:, :, :L]
        y = (lambda x, *d: x.permute(*d))(y, 0, 2, 1)
        return y + u * D_skip[None, None, :]

    def _B_ref(x, wq, wk, wv, wo):
        B, S, D = x.shape
        H = 32
        Dh = D // H
        q = (lambda x, *d: x.permute(*d))((x @ wq).reshape(B, S, H, Dh), 0, 2, 1, 3)
        k = x @ wk
        v = x @ wv
        scores = torch.einsum("bhqd,bkd->bhqk", q, k) * (Dh ** -0.5)
        p = _softmax(scores, axis=-1)
        o = torch.einsum("bhqk,bkd->bhqd", p, v)
        return (lambda x, *d: x.permute(*d))(o, 0, 2, 1, 3).reshape(B, S, H * Dh) @ wo

    x = A_u
    g = _sigmoid((x * gate_w).sum(-1, keepdims=True))
    a = _A_ref(x, A_log_A_real, A_A_imag, A_C_real, A_C_imag, A_log_dt, A_D_skip)
    b = _B_ref(x, B_wq, B_wk, B_wv, B_wo)
    return g * a + (1 - g) * b
```

```python
import re

def expand(op):
    op = op.strip()
    op = op.lstrip('-')
    m = re.match(r'^abs\((.*)\)$', op)
    if m: op = m.group(1)
    op = op.strip('|')
    m = re.match(r'^([vas])\[(\d+):(\d+)\]$', op)
    if m: return [f"{m.group(1)}{i}" for i in range(int(m.group(2)), int(m.group(3))+1)]
    m = re.match(r'^([vas])(\d+)$', op)
    if m: return [op]
    if op == 'vcc': return ['vcc_lo', 'vcc_hi']
    if op == 'exec': return ['exec_lo', 'exec_hi']
    if op in ('vcc_lo','vcc_hi','exec_lo','exec_hi','m0'): return [op]
    return []

TRANS = ('v_exp_f32','v_log_f32','v_rcp_f32','v_rsq_f32','v_sqrt_f32','v_sin_f32','v_cos_f32','v_exp_f16')

class Ins:
    def __init__(self, text, line):
        self.text = text; self.line = line
        t = text.split(';')[0].strip()
        parts = t.split(None, 1)
        self.mn = parts[0]
        rest = parts[1] if len(parts) > 1 else ''
        ops = []; depth = 0; cur = ''
        for ch in rest:
            if ch in '[(': depth += 1
            if ch in '])': depth -= 1
            if ch == ',' and depth == 0: ops.append(cur); cur = ''
            else: cur += ch
        if cur.strip(): ops.append(cur)
        self.mods = ''
        if ops:
            l = ops[-1].strip().split(None, 1)
            ops[-1] = l[0]
            self.mods = l[1] if len(l) > 1 else ''
        self.ops = [o.strip() for o in ops]
        mn = self.mn
        self.w = []; self.r = []
        self.kind = 'other'
        E = [expand(o) for o in self.ops]
        if mn.startswith('v_mfma'):
            self.kind = 'mfma'
            self.w = E[0]; self.a = E[1]; self.b = E[2]; self.c = E[3]; self.r = E[1]+E[2]+E[3]
            self.passes = 8 if '32x32' in mn else 4
        elif mn.startswith('v_'):
            self.kind = 'valu'
            if mn.startswith('v_cmp'):
                self.w = E[0]; self.r = sum(E[1:], [])
            elif mn.startswith('v_permlane') and 'swap' in mn:
                self.w = E[0]+E[1]; self.r = E[0]+E[1]
            elif mn in ('v_add_co_u32','v_sub_co_u32','v_addc_co_u32'):
                self.w = E[0]+E[1]; self.r = sum(E[2:], [])
            else:
                self.w = E[0]; self.r = sum(E[1:], [])
                if mn.startswith('v_fmac') or 'UNUSED_PRESERVE' in self.mods or mn.startswith('v_writelane') or '_dpp' in mn:
                    self.r += E[0]
        elif mn.startswith('ds_'):
            self.kind = 'ds'
            if 'read' in mn or 'permute' in mn or 'swizzle' in mn or '_rtn' in mn:
                self.w = E[0]; self.r = sum(E[1:], [])
            else:
                self.r = sum(E, [])
        elif mn.startswith('buffer_') or mn.startswith('global_'):
            self.kind = 'vmem'
            lds = ' lds' in (' ' + self.mods) or '_lds_' in mn
            self.lds = lds
            if 'load' in mn and not lds:
                self.w = E[0]; self.r = sum(E[1:], [])
            else:
                self.r = sum(E, [])
            self.store_data = []
            if 'store' in mn and ('x4' in mn or 'x3' in mn):
                self.store_data = E[0] if mn.startswith('buffer_') else E[1]
        elif mn.startswith('s_'):
            self.kind = 'salu'
            if mn.startswith('s_cmp') or mn.startswith('s_cbranch') or mn in ('s_branch','s_waitcnt','s_nop','s_barrier','s_setprio','s_endpgm','s_sleep'):
                self.r = sum(E, [])
            else:
                self.w = E[0] if E else []; self.r = sum(E[1:], [])
                if 'saveexec' in mn: self.w = self.w + ['exec_lo','exec_hi']
        self.states = 1
        if mn == 's_nop': self.states = int(self.ops[0], 0) + 1

def check(lines):
    ins = []
    for n, l in enumerate(lines):
        t = l.split(';')[0].strip()
        if not t or t.endswith(':') or t.startswith('.'): continue
        ins.append(Ins(t, n+1))
    errs = []
    for i, c in enumerate(ins):
        dist = 0
        for k in range(i-1, max(-1, i-24), -1):
            p = ins[k]
            if p.mn in ('s_branch', 's_endpgm'): break
            need = 0; why = ''
            pw = set(p.w); cr = set(c.r); cw = set(c.w)
            def upd(n_, w_):
                nonlocal need, why
                if n_ > need: need, why = n_, w_
            if p.kind == 'valu':
                sw = {x for x in pw if x[0] == 's' or x.startswith('vcc')}
                vw = {x for x in pw if x[0] in 'va' and not x.startswith('vcc')}
                if c.kind == 'mfma' and vw & cr: upd(2, 'valu->mfma operand')
                if c.kind == 'valu':
                    if p.mn.split('_e')[0] in TRANS and vw & cr and c.mn.split('_e')[0] not in TRANS: upd(1, 'trans->valu')
                    if p.mn.split('_e')[0] in TRANS and vw & cr: upd(1, 'trans->valu(any)')
                    if (c.mn.startswith('v_readfirstlane') or c.mn.startswith('v_readlane')) and vw & cr: upd(1, 'valu->readlane')
                    if c.mn.startswith('v_permlane') and vw & cr: upd(2, 'valu->permlane')
                    if '_dpp' in c.mn and vw & cr: upd(2, 'valu->dpp')
                    if sw & cr: upd(2, 'valu sgpr->valu read')
                    if (c.mn.startswith('v_readlane') or c.mn.startswith('v_writelane')) and sw & cr: upd(4, 'valu sgpr->lane select')
                    if ('sdwa' in p.mn or 'op_sel' in p.mods) and not p.mn.startswith('v_pk_') and vw & cr: upd(1, 'opsel/sdwa->valu')
                if c.kind in ('ds','vmem') and p.mn.split('_e')[0] in TRANS and vw & cr: upd(1, 'trans->mem (conservative)')
                if c.kind == 'vmem' and sw & cr: upd(5, 'valu sgpr->vmem')
                if c.kind == 'salu' and sw & cr: upd(1, 'valu sgpr->salu (conservative)')
                if c.kind == 'salu' and c.mn.startswith('s_cbranch_vcc') and any(x.startswith('vcc') for x in pw): upd(1, 'valu vcc->branch (conservative)')
            if p.kind == 'mfma':
                P = p.passes
                tab_ab = {4: 8, 8: 12}[P]; tab_ov = {4: 6, 8: 10}[P]; tab_war = {4: 3, 8: 7}[P]
                if c.kind == 'mfma':
                    if pw & set(c.a + c.b): upd(tab_ab, 'mfma D->mfma A/B')
                    if pw & set(c.c):
                        if not (p.w == c.c and p.passes == c.passes): upd(tab_ov, 'mfma D->mfma C overlap')
                    elif pw & cw and p.w != c.w: upd(tab_ov, 'mfma D->mfma D overlap (conservative)')
                elif c.kind in ('valu', 'ds', 'vmem'):
                    if pw & (cr | cw): upd(tab_ab, 'mfma D->valu/mem')
                    if c.kind == 'valu' and set(p.c) & cw: upd(tab_war, 'mfma C WAR')
            if p.kind == 'vmem' and p.store_data and set(p.store_data) & cw:
                upd(2 if c.kind in ('valu','mfma') else 1, 'store data WAR')
            if p.kind == 'salu' and 'm0' in pw and c.kind == 'vmem' and c.lds: upd(1, 'm0->lds dma')
            if need > dist:
                errs.append(f"line {c.line}: '{c.text}' needs {need} states after line {p.line} '{p.text}' ({why}), has {dist}")
            dist += p.states
            if dist >= 20: break
    return errs
```

```python
import sys, math, struct
sys.path.insert(0, 'gen')
import hazard

NAME = "gated_mix__ssm_conv_s4d__grouped_kv_mqa__prompt"
def f32(x): return "0x%08x" % struct.unpack('<I', struct.pack('<f', x))[0]
LOG2E = math.log2(math.e)
LOG2E_HI = struct.unpack('<f', struct.pack('<f', LOG2E))[0]
LOG2E_LO = LOG2E - LOG2E_HI

Q_OFF = 0x0; O_OFF = 0x280000; UT_OFF = 0x500000; AT_OFF = 0x780000; KD_OFF = 0xB40000
KV_OFF = 0xDD0000; G_OFF = 0xE00000; WS_SIZE = 0x1000000
KD_STRIDE = 4112
RB = 6144

class Asm:
    def __init__(self): self.L = []; self.n = 0
    def __call__(self, s): self.L.append("    " + s)
    def label(self, n): self.L.append(n + ":")
    def raw(self, s): self.L.append(s)
    def uid(self, p): self.n += 1; return f"{p}_{self.n}"
a = Asm()
def R(b, n): return f"v[{b}:{b+n-1}]"
def SR(b, n): return f"s[{b}:{b+n-1}]"

P_U, P_LA, P_AI, P_CR, P_CI, P_LDT, P_DS, P_BX = 40, 42, 44, 46, 48, 50, 52, 54
P_WQ, P_WK, P_WV, P_WO, P_GATE, P_OUT, P_DBG, P_WS = 56, 58, 60, 62, 64, 66, 68, 70
sW, sR, sJ = 3, 4, 5

def kstart(name, end):
    a.raw(f".globl {name}"); a.raw(".p2align 8"); a.raw(f".type {name},@function"); a.label(name)
    a("s_cmp_ge_u32 s2, 256")
    a(f"s_cbranch_scc1 {end}")
    a("s_load_dwordx16 s[40:55], s[0:1], 0")
    a("s_load_dwordx16 s[56:71], s[0:1], 64")
    a("v_lshrrev_b32 v1, 6, v0")
    a("v_and_b32 v0, 63, v0")
    a(f"v_readfirstlane_b32 s{sW}, v1")
    a(f"s_and_b32 s{sR}, s2, 7")
    a(f"s_lshl_b32 s{sR}, s{sR}, 2")
    a("s_bfe_u32 s6, s2, 0x20003")
    a(f"s_add_u32 s{sR}, s{sR}, s6")
    a(f"s_lshr_b32 s{sJ}, s2, 5")

def srd(d, p, size):
    a(f"s_mov_b32 s{d}, s{p}"); a(f"s_mov_b32 s{d+1}, s{p+1}")
    a(f"s_mov_b32 s{d+2}, {size}"); a(f"s_mov_b32 s{d+3}, 0x00020000")

def to_bf16_f32(v):
    a(f"v_cvt_pk_bf16_f32 v{v}, v{v}, v{v}")
    a(f"v_lshlrev_b32 v{v}, 16, v{v}")

def exp_acc(d, x, t, sL, sLlo, sLn2):
    a(f"v_mul_f32 v{d}, s{sL}, v{x}")
    a(f"v_fma_f32 v{t}, v{x}, s{sL}, -v{d}")
    a(f"v_fma_f32 v{t}, v{x}, s{sLlo}, v{t}")
    a(f"v_exp_f32 v{d}, v{d}")
    a(f"v_mul_f32 v{t}, s{sLn2}, v{t}")
    a(f"v_fma_f32 v{d}, v{d}, v{t}, v{d}")

W_BASE = 0; E_BASE = 102400
XF = 64; ACC = 144; EACC = 164; WF = [168, 188]
vFO, vFA, vT, vF, vA1, vA2, vWO, vXO, vEO, vSA = 2, 3, 4, 5, 6, 7, 8, 9, 10, 11
CHUNKS = [4, 4, 4, 4, 4]

def flag_setup(flags, cls_sgpr):
    a(f"s_lshl_b32 s6, s{cls_sgpr}, 2"); a(f"s_add_u32 s6, s6, {flags}")
    a(f"v_mov_b32 v{vFO}, s6")
    a(f"v_and_b32 v{vFA}, 7, v0"); a(f"v_min_u32 v{vFA}, 4, v{vFA}")
    a(f"v_lshlrev_b32 v{vFA}, 2, v{vFA}"); a(f"v_add_u32 v{vFA}, {flags}, v{vFA}")
    a(f"v_mov_b32 v{vT}, 0")
    a(f"ds_write_b32 v{vFO}, v{vT}")

def signal(val, vm):
    a(f"s_waitcnt vmcnt({vm})")
    a(f"v_mov_b32 v{vT}, {val}")
    a(f"ds_write_b32 v{vFO}, v{vT}")

def poll(val):
    l = a.uid("POLL"); d = a.uid("PDONE")
    a("s_mov_b32 s7, 0x40000")
    a.label(l)
    a(f"ds_read_b32 v{vF}, v{vFA}")
    a("s_sub_u32 s7, s7, 1")
    a("s_waitcnt lgkmcnt(0)")
    a(f"v_cmp_gt_u32 vcc, {val}, v{vF}")
    a(f"s_cbranch_scc1 {d}")
    a(f"s_cbranch_vccnz {l}")
    a.label(d)

def w_dma_setup(cls_sgpr):
    a(f"s_lshl_b32 s6, s{cls_sgpr}, 6")
    a(f"v_add_u32 v12, s6, v0")
    a("v_mul_u32_u24 v13, 0x199a, v12")
    a("v_lshrrev_b32 v13, 16, v13")
    a("v_mul_u32_u24 v14, 10, v13")
    a("v_sub_u32 v14, v12, v14")
    a("v_lshrrev_b32 v15, 1, v13")
    a("v_and_b32 v15, 4, v15")
    a("v_xor_b32 v13, v13, v15")
    a("v_mul_u32_u24 v13, 1280, v13")
    a(f"v_lshl_add_u32 v{vWO}, v14, 4, v13")
    a(f"s_mul_i32 s6, s{sJ}, 160")
    a(f"v_add_u32 v{vWO}, s6, v{vWO}")

def w_dma_issue(cls_sgpr, wsrd):
    a(f"s_lshl_b32 s72, s{cls_sgpr}, 10")
    a("s_mov_b32 s73, 0")
    for s in range(20):
        a("s_mov_b32 m0, s72")
        a("s_add_u32 s72, s72, 5120")
        a(f"buffer_load_dwordx4 v{vWO}, {SR(wsrd,4)}, s73 offen lds")
        a("s_add_u32 s73, s73, 40960")

def x_issue(xsrd, soff):
    a(f"s_lshl_b32 s6, s{sR}, 6"); a(f"s_lshl_b32 s7, s{sW}, 4"); a("s_add_u32 s6, s6, s7")
    a("v_and_b32 v12, 15, v0"); a("v_add_u32 v12, s6, v12")
    a("v_mul_u32_u24 v12, 1280, v12")
    a("v_lshrrev_b32 v13, 4, v0")
    a(f"v_lshl_add_u32 v{vXO}, v13, 4, v12")
    for s in range(20):
        a(f"buffer_load_dwordx4 {R(XF+4*s,4)}, v{vXO}, {SR(xsrd,4)}, {soff} offen offset:{64*s}")

def tr_addr_setup():
    a("v_lshrrev_b32 v12, 4, v0")
    a("v_bfe_u32 v13, v0, 2, 2")
    a("v_lshl_add_u32 v13, v12, 3, v13")
    a("v_and_b32 v14, 1, v12")
    a("v_lshlrev_b32 v14, 2, v14")
    a("v_add_u32 v15, v13, v14")
    a("v_xor_b32 v16, 4, v15")
    a("v_and_b32 v17, 3, v0")
    a("v_mul_u32_u24 v17, 40, v17")
    a(f"v_mad_u32_u24 v{vA1}, v15, s74, v17")
    a(f"v_mad_u32_u24 v{vA2}, v16, s74, v17")

def w_read(s, base_step):
    f = WF[s & 1]
    for ct in range(5):
        off = 5120 * (s - base_step) + 8 * ct
        a(f"ds_read_b64_tr_b16 {R(f+4*ct,2)}, v{vA1} offset:{off}")
        a(f"ds_read_b64_tr_b16 {R(f+4*ct+2,2)}, v{vA2} offset:{off}")

def gemm_main(extra_vm, val0, first_c_zero=True, xwait=None):
    s = 0; base = 0
    done = 0
    for c, n in enumerate(CHUNKS):
        done += n
        signal(val0 + c, 20 - done + extra_vm)
        poll(val0 + c)
        if s - base + n > 12:
            a(f"v_add_u32 v{vA1}, {5120*(s-base)}, v{vA1}"); a(f"v_add_u32 v{vA2}, {5120*(s-base)}, v{vA2}")
            base = s
        w_read(s, base)
        for i in range(n):
            if i + 1 < n:
                w_read(s + 1, base); a("s_waitcnt lgkmcnt(10)")
            else:
                a("s_waitcnt lgkmcnt(0)")
            f = WF[s & 1]
            for ct in range(5):
                cc = "0" if (s == 0 and first_c_zero) else R(ACC+4*ct, 4)
                a(f"v_mfma_f32_16x16x32_bf16 {R(ACC+4*ct,4)}, {R(f+4*ct,4)}, {R(XF+4*s,4)}, {cc}")
            s += 1

def loader_signals(extra_vm, val0):
    done = 0
    for c, n in enumerate(CHUNKS):
        done += n
        signal(val0 + c, 20 - done + extra_vm)

def k1():
    KD_BASE = 112640; FL = 161792
    kstart("prep_kernel", "K1_END")
    a("s_movk_i32 s74, 160")
    a("s_waitcnt lgkmcnt(0)")
    srd(8, P_U, 2621440); srd(12, P_WQ, 819200); srd(20, P_WS, WS_SIZE)
    srd(24, P_LA, 163840); srd(28, P_AI, 163840); srd(32, P_CR, 163840); srd(36, P_CI, 163840)
    a(f"s_cmp_lt_u32 s{sJ}, 3")
    a(f"s_cselect_b32 s16, s{P_WK}, s{P_WV}"); a(f"s_cselect_b32 s17, s{P_WK+1}, s{P_WV+1}")
    a(f"s_cselect_b32 s75, 0, 3")
    a(f"s_sub_u32 s75, s{sJ}, s75"); a("s_lshl_b32 s75, s75, 4")
    a(f"s_cmp_lt_u32 s{sJ}, 6")
    a(f"s_cselect_b32 s16, s16, s{P_GATE}"); a(f"s_cselect_b32 s17, s17, s{P_GATE+1}")
    a("s_movk_i32 s18, 1280"); a("s_cselect_b32 s18, 25600, s18"); a("s_mov_b32 s19, 0x00020000")
    a("s_cselect_b32 s75, s75, 0"); a("s_cselect_b32 s76, 40, 16")
    a(f"s_cmp_eq_u32 s{sW}, 7"); a("s_cbranch_scc1 K1_LOADER")
    a(f"s_cmp_ge_u32 s{sW}, 4"); a("s_cbranch_scc1 K1_KD")

    def e_issue(cls):
        a(f"v_mul_u32_u24 v{vEO}, s76, v0"); a(f"v_add_u32 v{vEO}, s75, v{vEO}")
        a(f"s_lshl_b32 s72, s{cls}, 11"); a(f"s_add_u32 s72, s72, {E_BASE}")
        a(f"s_mul_i32 s73, s{cls}, s76"); a("s_lshl_b32 s73, s73, 7")
        a("s_mov_b32 m0, s72"); a("s_add_u32 s72, s72, 1024")
        a(f"buffer_load_dwordx4 v{vEO}, s[16:19], s73 offen lds")
        a("s_lshl_b32 s6, s76, 6"); a("s_add_u32 s73, s73, s6")
        a("s_mov_b32 m0, s72"); a("s_nop 0")
        a(f"buffer_load_dwordx4 v{vEO}, s[16:19], s73 offen lds")

    e_issue(sW)
    x_issue(8, "0")
    w_dma_setup(sW)
    w_dma_issue(sW, 12)
    flag_setup(FL, sW)
    tr_addr_setup()
    a("s_waitcnt lgkmcnt(0)"); a("s_barrier")
    a("v_lshrrev_b32 v12, 4, v0")
    a("v_and_b32 v13, 15, v0")
    a(f"s_mul_i32 s77, s{sR}, {RB}"); a(f"s_add_u32 s77, s77, {KV_OFF}")
    a(f"s_lshr_b32 s78, s{sW}, 1")
    a(f"s_and_b32 s79, s{sW}, 1")
    a("v_bfe_u32 v14, v0, 2, 2"); a("v_lshl_add_u32 v14, v12, 3, v14"); a("v_lshlrev_b32 v14, 4, v14")
    a("v_and_b32 v15, 1, v0"); a("v_lshl_add_u32 v18, v15, 3, v14"); a(f"v_add_u32 v18, {E_BASE}, v18")
    a("v_and_b32 v14, 3, v13"); a("v_bfe_u32 v15, v13, 2, 1"); a("v_lshl_add_u32 v14, v15, 3, v14")
    a("v_bfe_u32 v15, v13, 3, 1"); a("v_lshl_add_u32 v14, v15, 2, v14")
    a("s_lshl_b32 s6, s79, 4"); a("v_add_u32 v14, s6, v14")
    a("v_and_b32 v15, 1, v12")
    a("v_lshrrev_b32 v16, 1, v12")
    signal(1, 40); poll(1)
    a(f"s_cmp_ge_u32 s{sJ}, 7"); a("s_cbranch_scc1 K1_XN")
    a(f"s_cmp_ge_u32 s{sJ}, 6"); a("s_cbranch_scc1 K1_XG")
    a(f"s_cmp_ge_u32 s{sJ}, 3"); a("s_cbranch_scc1 K1_XV")

    def extra_loop(mode):
        def rd(g):
            for i in range(5):
                s = 5*g + i; f = WF[g & 1] + 4*i
                if mode == 'G':
                    a(f"ds_read_b128 {R(f,4)}, v18 offset:{64*s}")
                else:
                    a(f"ds_read_b64_tr_b16 {R(f,2)}, v18 offset:{512*s}")
                    a(f"ds_read_b64_tr_b16 {R(f+2,2)}, v18 offset:{512*s+64}")
        per = 5 if mode == 'G' else 10
        rd(0)
        for g in range(4):
            if g < 3:
                rd(g+1); a(f"s_waitcnt vmcnt({20 + 20 - 5*(g+1)}) lgkmcnt({per})")
            else:
                a("s_waitcnt vmcnt(20) lgkmcnt(0)")
            for i in range(5):
                s = 5*g + i; f = WF[g & 1] + 4*i
                cc = "0" if s == 0 else R(EACC, 4)
                if mode == 'V':
                    a(f"v_mfma_f32_16x16x32_bf16 {R(EACC,4)}, {R(XF+4*s,4)}, {R(f,4)}, {cc}")
                else:
                    a(f"v_mfma_f32_16x16x32_bf16 {R(EACC,4)}, {R(f,4)}, {R(XF+4*s,4)}, {cc}")
        a("s_nop 7")

    a(f"s_cmp_eq_u32 s{sJ}, 2"); a("s_cbranch_scc1 K1_XK2")
    a("s_lshl_b32 s6, s78, 10"); a(f"s_lshl_b32 s7, s{sJ}, 9"); a("s_add_u32 s6, s6, s7")
    a(f"v_lshlrev_b32 v{vSA}, 4, v14"); a(f"v_lshl_add_u32 v{vSA}, v15, 3, v{vSA}"); a(f"v_add_u32 v{vSA}, s6, v{vSA}")
    a("s_branch K1_XK")
    a.label("K1_XK2")
    a("s_lshl_b32 s6, s78, 3"); a("s_add_u32 s6, s6, 2048")
    a(f"v_lshlrev_b32 v{vSA}, 4, v14"); a(f"v_lshl_add_u32 v{vSA}, v16, 9, v{vSA}"); a(f"v_add_u32 v{vSA}, s6, v{vSA}")
    a(f"v_lshl_or_b32 v{vSA}, v15, 30, v{vSA}")
    a.label("K1_XK")
    extra_loop('K')
    a("s_branch K1_XST")
    a.label("K1_XV")
    a("v_and_b32 v17, 7, v13"); a("s_lshr_b32 s6, s75, 1"); a("v_add_u32 v17, s6, v17")
    a("s_mul_i32 s6, s78, 1344"); a("s_mul_i32 s7, s79, 672"); a("s_add_u32 s6, s6, s7"); a("s_add_u32 s6, s6, 3072")
    a(f"v_mul_u32_u24 v{vSA}, 336, v16"); a(f"v_lshl_add_u32 v{vSA}, v17, 4, v{vSA}"); a(f"v_lshl_add_u32 v{vSA}, v15, 3, v{vSA}")
    a(f"v_add_u32 v{vSA}, s6, v{vSA}")
    a("v_add_u32 v17, 12, v17"); a("v_lshrrev_b32 v17, 5, v17")
    a(f"v_lshl_or_b32 v{vSA}, v17, 30, v{vSA}")
    extra_loop('V')
    a.label("K1_XST")
    a(f"v_cvt_pk_bf16_f32 v{EACC}, v{EACC}, v{EACC+1}")
    a(f"v_cvt_pk_bf16_f32 v{EACC+1}, v{EACC+2}, v{EACC+3}")
    a(f"buffer_store_dwordx2 {R(EACC,2)}, v{vSA}, s[20:23], s77 offen")
    a("s_branch K1_Q")
    a.label("K1_XG")
    a(f"v_lshlrev_b32 v18, 4, v12"); a(f"v_add_u32 v18, {E_BASE}, v18")
    a(f"s_lshl_b32 s6, s{sR}, 6"); a(f"s_lshl_b32 s7, s{sW}, 4"); a("s_add_u32 s6, s6, s7")
    a(f"v_add_u32 v{vSA}, s6, v13"); a(f"v_lshlrev_b32 v{vSA}, 2, v{vSA}"); a(f"v_lshl_add_u32 v{vSA}, v15, 13, v{vSA}")
    extra_loop('G')
    to_bf16_f32(EACC)
    a(f"v_mul_f32 v{EACC}, {f32(-LOG2E)}, v{EACC}")
    a(f"v_exp_f32 v{EACC}, v{EACC}")
    a("v_cmp_eq_u32 vcc, 1, v15")
    a(f"v_add_f32 v{EACC}, 1.0, v{EACC}")
    a(f"v_rcp_f32 v{EACC}, v{EACC}")
    a("s_nop 0")
    to_bf16_f32(EACC)
    a(f"v_sub_f32 v{EACC+1}, 1.0, v{EACC}")
    to_bf16_f32(EACC+1)
    a(f"v_cndmask_b32 v{EACC}, v{EACC}, v{EACC+1}, vcc")
    a(f"s_mov_b32 s6, {G_OFF}")
    a(f"buffer_store_dword v{EACC}, v{vSA}, s[20:23], s6 offen")
    a("s_branch K1_Q")
    a.label("K1_XN")
    a("s_mul_i32 s6, s78, 1344"); a("s_mul_i32 s7, s79, 672"); a("s_add_u32 s6, s6, s7"); a("s_add_u32 s6, s6, 3392")
    a(f"v_mul_u32_u24 v{vSA}, 336, v16"); a(f"v_lshl_add_u32 v{vSA}, v15, 3, v{vSA}"); a(f"v_add_u32 v{vSA}, s6, v{vSA}")
    a(f"v_mov_b32 v{EACC}, 0x3f803f80"); a(f"v_mov_b32 v{EACC+1}, 0x3f803f80")
    a(f"buffer_store_dwordx2 {R(EACC,2)}, v{vSA}, s[20:23], s77 offen")
    a.label("K1_Q")
    gemm_main(1, 2)
    a("v_lshrrev_b32 v12, 4, v0"); a("v_mul_u32_u24 v12, 24, v12"); a(f"v_add_u32 v12, v12, v{vXO}")
    a(f"s_mul_i32 s6, s{sJ}, 160"); a(f"s_add_u32 s6, s6, {Q_OFF}")
    a(f"s_mov_b32 s7, {f32(20**-0.5 * LOG2E)}")
    a("s_nop 2")
    for i in range(20): a(f"v_mul_f32 v{ACC+i}, s7, v{ACC+i}")
    for i in range(10): a(f"v_cvt_pk_bf16_f32 v{XF+i}, v{ACC+2*i}, v{ACC+2*i+1}")
    a(f"buffer_store_dwordx4 {R(XF,4)}, v12, s[20:23], s6 offen")
    a(f"buffer_store_dwordx4 {R(XF+4,4)}, v12, s[20:23], s6 offen offset:16")
    a(f"buffer_store_dwordx2 {R(XF+8,2)}, v12, s[20:23], s6 offen offset:32")
    a("s_endpgm")

    a.label("K1_LOADER")
    a("s_mov_b32 s80, 4")
    e_issue(80)
    w_dma_setup(80)
    w_dma_issue(80, 12)
    a("v_and_b32 v12, 3, v0"); a("v_bfe_u32 v13, v0, 2, 2"); a("v_lshl_add_u32 v12, v13, 3, v12")
    a(f"s_lshl_b32 s6, s{sR}, 6"); a("v_add_u32 v12, s6, v12"); a("v_mul_u32_u24 v12, 1280, v12")
    a("v_lshrrev_b32 v13, 4, v0"); a("v_lshl_add_u32 v12, v13, 3, v12")
    a(f"s_mul_i32 s6, s{sJ}, 160")
    for ph in range(4):
        a(f"s_add_u32 s7, s6, {(32*(ph>>1) + 4*(ph&1))*1280}")
        for i in range(5):
            a(f"buffer_load_dwordx2 {R(XF+2*(5*ph+i),2)}, v12, s[8:11], s7 offen offset:{32*i}")
    flag_setup(FL, 80)
    a("v_and_b32 v14, 15, v0"); a("v_lshlrev_b32 v15, 2, v13"); a("v_sub_u32 v14, v14, v15")
    a("v_mov_b32 v16, 0x3f80"); a("v_mov_b32 v17, 0x3f800000"); a("v_mov_b32 v18, 0")
    a("v_cmp_eq_u32 vcc, 0, v14"); a("s_nop 1"); a("v_cndmask_b32 v20, v18, v16, vcc")
    a("v_cmp_eq_u32 vcc, 1, v14"); a("s_nop 1"); a("v_cndmask_b32 v20, v20, v17, vcc")
    a("v_cmp_eq_u32 vcc, 2, v14"); a("s_nop 1"); a("v_cndmask_b32 v21, v18, v16, vcc")
    a("v_cmp_eq_u32 vcc, 3, v14"); a("s_nop 1"); a("v_cndmask_b32 v21, v21, v17, vcc")
    a("v_and_b32 v14, 15, v0"); a("v_lshlrev_b32 v14, 12, v14"); a("v_lshl_add_u32 v14, v13, 4, v14")
    a(f"s_mul_i32 s81, s{sJ}, {80*4096}"); a(f"s_lshl_b32 s7, s{sR}, 7"); a("s_add_u32 s81, s81, s7"); a(f"s_add_u32 s81, s81, {UT_OFF}")
    a("s_waitcnt lgkmcnt(0)"); a("s_barrier")
    signal(1, 40)
    loader_signals(20, 2)
    a("s_waitcnt vmcnt(0)")
    D = 104
    for q in range(20):
        a(f"v_mfma_f32_16x16x16_bf16 {R(D+4*q,4)}, {R(XF+2*q,2)}, v[20:21], 0")
    for pair in range(2):
        for i in range(5):
            d0 = D + 4*(5*(2*pair)+i); d1 = D + 4*(5*(2*pair+1)+i)
            o = 24 + 4*((5*pair+i) % 8)
            a(f"v_cvt_pk_bf16_f32 v{o}, v{d0}, v{d0+1}"); a(f"v_cvt_pk_bf16_f32 v{o+1}, v{d0+2}, v{d0+3}")
            a(f"v_cvt_pk_bf16_f32 v{o+2}, v{d1}, v{d1+1}"); a(f"v_cvt_pk_bf16_f32 v{o+3}, v{d1+2}, v{d1+3}")
            a(f"s_add_u32 s7, s81, {i*16*4096}")
            a(f"buffer_store_dwordx4 {R(o,4)}, v14, s[20:23], s7 offen offset:{64*pair}")
    a("s_endpgm")

    a.label("K1_KD")
    a(f"s_sub_u32 s80, s{sW}, 4")
    a("s_lshl_b32 s81, s80, 8"); a("s_add_u32 s81, s81, s2")
    a("s_cmp_ge_u32 s81, 640"); a("s_cbranch_scc1 K1_END")
    a("s_lshl_b32 s6, s81, 8")
    a("v_lshlrev_b32 v1, 2, v0")
    for i, sr in enumerate((24, 28, 32, 36)):
        a(f"buffer_load_dword v{12+i}, v1, {SR(sr,4)}, s6 offen")
    a("s_and_b32 s6, s81, 0xfffffffe"); a("s_lshl_b32 s6, s6, 1")
    a(f"s_load_dword s82, {SR(P_LDT,2)}, s6")
    a(f"s_load_dword s83, {SR(P_DS,2)}, s6")
    a("s_barrier")
    a(f"s_mov_b32 s84, {f32(LOG2E_HI)}"); a(f"s_mov_b32 s85, {f32(LOG2E_LO)}"); a(f"s_mov_b32 s86, {f32(math.log(2))}")
    a(f"s_lshl_b32 s87, s80, 14"); a(f"s_add_u32 s87, s87, {KD_BASE}")
    a("v_add_u32 v1, s87, v1")
    KA = 128
    for i in range(32): a(f"v_mov_b32 v{KA+i}, 0")
    a("v_and_b32 v5, 31, v0"); a("v_lshrrev_b32 v6, 5, v0"); a("v_lshlrev_b32 v6, 4, v6"); a("v_add_u32 v6, s87, v6")
    a("s_movk_i32 s88, 272")
    a("v_mad_u32_u24 v2, v5, s88, v6")
    a("v_and_b32 v7, 7, v5"); a("v_sub_u32 v7, 7, v7"); a("v_cvt_f32_u32 v7, v7")
    a("v_lshrrev_b32 v8, 3, v5")
    a("v_min_u32 v9, 2, v8"); a("v_sub_u32 v9, 0, v9"); a("v_ldexp_f32 v9, v7, v9"); a("v_rndne_f32 v9, v9"); a("v_cvt_u32_f32 v9, v9")
    a("v_lshlrev_b32 v10, 3, v8"); a(f"s_mov_b32 s6, {hex((32+0) | (32+8)<<8 | (32+13)<<16 | (32+16)<<24)}")
    a("v_bfe_u32 v10, s6, v10, 8"); a("v_add_u32 v9, v9, v10")
    a("v_mad_u32_u24 v3, v9, s88, v6")
    a("v_mul_f32 v9, 0x3e000000, v7"); a("v_rndne_f32 v9, v9"); a("v_cvt_u32_f32 v9, v9")
    a("v_lshl_add_u32 v9, v8, 1, v9"); a("v_add_u32 v9, 51, v9")
    a("v_mad_u32_u24 v4, v9, s88, v6")
    a("s_waitcnt lgkmcnt(0)")
    a("s_and_b32 s6, s81, 1"); a("s_xor_b32 s6, s6, 1"); a("s_lshl_b32 s6, s6, 4")
    a("s_lshl_b32 s82, s82, s6"); a("s_and_b32 s82, s82, 0xffff0000")
    a("s_lshl_b32 s83, s83, s6"); a("s_and_b32 s83, s83, 0xffff0000")
    a("v_mov_b32 v5, s82")
    exp_acc(6, 5, 7, 84, 85, 86)
    to_bf16_f32(6)
    a("v_add_f32 v7, v6, v6")
    a("s_mov_b32 s89, 2")
    a("s_waitcnt vmcnt(0)")
    a.label("K1_KDLOOP")
    a("v_and_b32 v16, 0xffff0000, v12")
    exp_acc(17, 16, 18, 84, 85, 86)
    to_bf16_f32(17)
    a("v_mul_f32 v17, v17, v6")
    a(f"v_mul_f32 v17, {f32(-LOG2E)}, v17")
    a("v_and_b32 v16, 0xffff0000, v13")
    a("v_mul_f32 v16, v16, v6")
    a("v_mul_f32 v16, 0.15915494, v16")
    W1, W2, W4, W8, W16, W256 = 20, 22, 24, 26, 28, 30
    H0 = 32; HB = [H0] + [34+2*i for i in range(7)]
    EO, EE, HX, HY = 48, 50, 52, 54
    T = [56, 58, 60, 62]; PK = [64, 65, 66, 67, 68, 69, 70, 71]
    for w, p in ((W1, 1.0), (W8, 8.0), (W256, 256.0)):
        a(f"v_mul_f32 v18, {f32(p)}, v17"); a(f"v_mul_f32 v19, {f32(p)}, v16")
        a("v_exp_f32 v18, v18"); a("v_fract_f32 v19, v19")
        a(f"v_cos_f32 v{w}, v19"); a(f"v_sin_f32 v{w+1}, v19")
        a("s_nop 0")
        a(f"v_mul_f32 v{w}, v{w}, v18"); a(f"v_mul_f32 v{w+1}, v{w+1}, v18")
    a(f"v_and_b32 v{H0}, 0xffff0000, v14"); a(f"v_and_b32 v{H0+1}, 0xffff0000, v15")
    a(f"v_mul_f32 v{H0}, v{H0}, v7"); a(f"v_mul_f32 v{H0+1}, v{H0+1}, v7")
    def cm1(t, x, w): a(f"v_pk_mul_f32 {R(t,2)}, {R(x,2)}, {R(w,2)} op_sel:[0,0] op_sel_hi:[1,0]")
    def cm2(d, x, w, t): a(f"v_pk_fma_f32 {R(d,2)}, {R(x,2)}, {R(w,2)}, {R(t,2)} op_sel:[1,1,0] op_sel_hi:[0,1,1] neg_lo:[1,0,0]")
    def out(pk, x, row, conj):
        a(f"v_cvt_pk_bf16_f32 v{pk}, v{x}, {'-' if conj else ''}v{x+1}")
    def wr(pk, row): a(f"ds_write_b32 v1, v{pk} offset:{272*row}")
    cm1(T[0], W1, W1); cm1(T[1], W8, W8); cm2(W2, W1, W1, T[0]); cm2(W16, W8, W8, T[1])
    a(f"v_mov_b32 v{PK[0]}, 0x3f80"); out(PK[1], W8, 1, False)
    cm1(T[0], W2, W2); out(PK[2], W16, 2, False); cm2(W4, W2, W2, T[0]); out(PK[3], H0, 32, True)
    wr(PK[0], 0); wr(PK[1], 1); wr(PK[2], 2); wr(PK[3], 32)
    sEO = [(EO, W8 if i == 0 else EO, W16, 3+2*i, False) for i in range(15)]
    sEE = [(EE, W16 if i == 0 else EE, W16, 4+2*i, False) for i in range(14)]
    hb_row = [32, 40, 45, 48, 51, 53, 55, 57]
    sX = [(HX, H0 if i == 0 else HX, W1, 33+i, True) for i in range(7)]
    sX += [(HX, HB[1] if i == 0 else HX, W2, 41+i, True) for i in range(4)]
    sX += [(HX, HB[2] if i == 0 else HX, W4, 46+i, True) for i in range(2)]
    sY = [(HB[b], HB[b-1], W256, hb_row[b], True) for b in range(1, 8)]
    sY += [(HY, HB[b], W8, hb_row[b]+1, True) for b in range(4, 8)]
    sY += [(HY, HB[3] if i == 0 else HY, W4, 49+i, True) for i in range(2)]
    for g in range(15):
        ts = [s[g] for s in (sEO, sEE, sX, sY) if g < len(s)]
        pk = PK[4*((g+1) & 1):]
        for i, t in enumerate(ts): cm1(T[i], t[1], t[2])
        for i, t in enumerate(ts): cm2(t[0], t[1], t[2], T[i])
        for i, t in enumerate(ts): out(pk[i], t[0], t[3], t[4])
        for i, t in enumerate(ts): wr(pk[i], t[3])
    for i in range(4): a(f"v_lshlrev_b32 v{12+i}, 16, v{12+i}")
    a("s_waitcnt lgkmcnt(0)")
    FR = 160
    def rd(s):
        a(f"ds_read_b128 {R(FR+12*s,4)}, v2 offset:{32*s}")
        a(f"ds_read_b128 {R(FR+12*s+4,4)}, v3 offset:{32*s}")
        a(f"ds_read_b128 {R(FR+12*s+8,4)}, v4 offset:{32*s}")
    for s in range(4): rd(s)
    for s in range(8):
        if s + 4 < 8:
            a("s_waitcnt lgkmcnt(9)")
        else:
            a(f"s_waitcnt lgkmcnt({3*(7-s)})")
        a(f"v_mfma_f32_32x32x16_bf16 {R(KA,16)}, {R(FR+12*s+4,4)}, {R(FR+12*s,4)}, {R(KA,16)}")
        a(f"v_mfma_f32_32x32x16_bf16 {R(KA+16,16)}, {R(FR+12*s+8,4)}, {R(FR+12*s,4)}, {R(KA+16,16)}")
        if s + 4 < 8: rd(s+4)
    a("s_sub_u32 s89, s89, 1"); a("s_cmp_lg_u32 s89, 0"); a("s_cbranch_scc1 K1_KDLOOP")
    a("v_mov_b32 v16, 0"); a("v_mov_b32 v17, 0"); a("v_mov_b32 v18, 0")
    a("v_writelane_b32 v18, s83, 32")
    a("s_mov_b32 s90, 0xaaaaaaaa"); a("s_mov_b32 s91, 0xaaaaaaaa")
    a("v_and_b32 v5, 31, v0"); a("v_lshlrev_b32 v5, 4, v5"); a("v_sub_u32 v5, 496, v5")
    a("v_lshrrev_b32 v8, 5, v0"); a("v_lshl_add_u32 v5, v8, 3, v5")
    a(f"s_mul_i32 s6, s81, {KD_STRIDE}"); a(f"s_add_u32 s6, s6, {KD_OFF}")
    a("v_and_b32 v8, 1, v0"); a("v_lshlrev_b32 v8, 3, v8"); a("v_add_u32 v8, 4096, v8")
    a("buffer_store_dwordx2 v[16:17], v8, s[20:23], s6 offen")
    a(f"v_add_f32 v{KA+3}, v{KA+3}, v18")
    for jj in range(4):
        a(f"v_cndmask_b32 v{KA+16+4*jj+3}, v{KA+16+4*jj+3}, v{KA+16+4*jj+2}, s[90:91]")
    for b in range(8):
        a(f"v_cvt_pk_bf16_f32 v{20+2*b}, v{KA+4*b}, v{KA+4*b+1}")
        a(f"v_cvt_pk_bf16_f32 v{21+2*b}, v{KA+4*b+2}, v{KA+4*b+3}")
        a(f"buffer_store_dwordx2 {R(20+2*b,2)}, v5, s[20:23], s6 offen offset:{512*(7-b)}")
    a.label("K1_END")
    a("s_endpgm")

def k2():
    RING = 0; GS = 36864; SLOT = 12288
    KC = 73728; KCH = 16640; KCC = 4160
    UP = 123648; UCH = 6144; PS = 1536
    FL = 142080; LM = 142144
    S = [0+16, 16+16]; P = 48; O = [56, 72]; NEGM = [88, 104]; Q1 = [120, 124]; Q2 = [128, 130]; CACC = 132
    K1 = [148, 152]; K2 = [156, 160]; V1 = [164, 172]; V2 = [168, 176]; CA = [180, 184]; CB = [188, 192]
    vLK, vLV, vAK, vAV, vCA, vCB, vFO_, vFA_, vF_, vT_, vDM = 2, 3, 4, 5, 6, 7, 8, 9, 10, 11, 12
    sG, sW3, sC, sSlot, sGB, sKVsrc, sDst = 72, 73, 74, 75, 76, 77, 78
    kstart("attn_kernel", "K2_END")
    a(f"s_lshr_b32 s{sG}, s{sW}, 2"); a(f"s_and_b32 s{sW3}, s{sW}, 3")
    a(f"v_lshlrev_b32 v{vDM}, 4, v0")
    a("s_waitcnt lgkmcnt(0)")
    srd(20, P_WS, WS_SIZE)
    a(f"s_mul_i32 s{sGB}, s{sG}, {GS}")
    a(f"s_mul_i32 s{sKVsrc}, s{sG}, {16*RB}"); a(f"s_lshl_b32 s6, s{sW3}, 10")
    a(f"s_add_u32 s{sKVsrc}, s{sKVsrc}, s6"); a(f"s_add_u32 s{sKVsrc}, s{sKVsrc}, {KV_OFF}")
    a(f"s_add_u32 s{sDst}, s{sGB}, s6")
    def kv_dma(dst_sgpr):
        for i in range(3):
            a(f"s_add_u32 m0, s{dst_sgpr}, {4096*i}")
            a(f"s_add_u32 s6, s{sKVsrc}, {4096*i}")
            a(f"buffer_load_dwordx4 v{vDM}, s[20:23], s6 offen lds")
        a(f"s_add_u32 s{sKVsrc}, s{sKVsrc}, {SLOT}")
    kv_dma(sDst)
    a("v_and_b32 v13, 31, v0"); a("v_lshrrev_b32 v14, 5, v0")
    a(f"s_lshl_b32 s6, s{sR}, 6"); a("v_add_u32 v15, s6, v13"); a("v_mul_u32_u24 v15, 1280, v15")
    a(f"s_mul_i32 s79, s{sJ}, 160"); a(f"s_mul_i32 s6, s{sW3}, 40"); a("s_add_u32 s79, s79, s6")
    a("v_lshl_add_u32 v196, v14, 4, v15")
    a("v_lshl_or_b32 v197, v14, 30, v15")
    for qi in range(2):
        a(f"s_add_u32 s6, s79, {Q_OFF + qi*32*1280}")
        a(f"buffer_load_dwordx4 {R(Q1[qi],4)}, v196, s[20:23], s6 offen")
        a(f"buffer_load_dwordx2 {R(Q2[qi],2)}, v197, s[20:23], s6 offen offset:32")
    a("s_and_b32 s80, s2, 1"); a("s_lshr_b32 s81, s2, 1")
    a("s_lshl_b32 s82, s80, 3"); a(f"s_add_u32 s82, s82, s{sW}"); a("s_min_u32 s82, s82, 14")
    a("s_mul_i32 s83, s82, 43"); a("s_lshr_b32 s83, s83, 7")
    a("s_mul_i32 s84, s83, 3"); a("s_sub_u32 s84, s82, s84")
    a("s_mul_i32 s85, s81, 5"); a("s_add_u32 s86, s85, s83")
    a("s_lshl_b32 s6, s80, 1"); a("s_sub_u32 s83, s83, s6")
    a("s_add_u32 s85, s85, s6")
    a(f"s_mul_i32 s87, s{sW}, 6")
    for i in range(6):
        a(f"s_add_u32 s88, s87, {i}")
        a("s_lshr_b32 s89, s88, 2"); a("s_and_b32 s88, s88, 3"); a("s_lshl_b32 s88, s88, 10")
        a(f"s_mul_i32 s90, s89, {KCC}"); a("s_add_u32 s90, s90, s88"); a(f"s_add_u32 m0, s90, {KC}")
        a("s_lshr_b32 s90, s89, 2"); a("s_add_u32 s90, s90, s85"); a(f"s_mul_i32 s90, s90, {KD_STRIDE}")
        a("s_and_b32 s89, s89, 3"); a("s_lshl_b32 s89, s89, 1")
        a("s_add_u32 s90, s90, s89"); a("s_add_u32 s90, s90, s88"); a(f"s_add_u32 s90, s90, {KD_OFF}")
        a(f"buffer_load_dwordx4 v{vDM}, s[20:23], s90 offen lds")
    a("v_lshlrev_b32 v198, 6, v0")
    for i in range(2):
        if i == 0: a(f"s_mov_b32 s88, s{sW}")
        else: a(f"s_add_u32 s88, s{sW}, 8"); a("s_min_u32 s88, s88, 11")
        a(f"s_mul_i32 s90, s88, {PS}"); a(f"s_add_u32 m0, s90, {UP+512}")
        a("s_lshr_b32 s90, s88, 2"); a("s_add_u32 s90, s90, s85"); a("s_lshl_b32 s90, s90, 12")
        a("s_and_b32 s88, s88, 3"); a("s_lshl_b32 s88, s88, 4"); a("s_add_u32 s90, s90, s88"); a(f"s_add_u32 s90, s90, {UT_OFF}")
        a(f"buffer_load_dwordx4 v198, s[20:23], s90 offen lds")
    a(f"s_add_u32 s7, s{sDst}, {SLOT}")
    kv_dma(7)
    a(f"s_lshl_b32 s6, s{sR}, 6"); a(f"s_lshl_b32 s7, s{sG}, 5"); a("s_add_u32 s6, s6, s7"); a("s_lshl_b32 s6, s6, 2")
    a(f"s_add_u32 s6, s6, {G_OFF+8192}")
    a("v_lshlrev_b32 v199, 2, v13")
    a("buffer_load_dword v200, v199, s[20:23], s6 offen")
    for i in range(4): a(f"v_mov_b32 v{16+i}, 0")
    a(f"s_min_u32 s6, s{sW}, 5"); a(f"s_mul_i32 s6, s6, {2*PS}"); a(f"s_add_u32 s6, s6, {UP}")
    a(f"v_mul_u32_u24 v20, {PS}, v14"); a("v_lshl_add_u32 v20, v13, 4, v20"); a("v_add_u32 v20, s6, v20")
    a("ds_write_b128 v20, v[16:19]")
    a("v_lshrrev_b32 v20, 2, v0"); a("v_min_u32 v20, 11, v20"); a(f"v_mul_u32_u24 v20, {KCC}, v20")
    a("v_and_b32 v21, 3, v0"); a("v_lshl_add_u32 v20, v21, 4, v20")
    a(f"v_add_u32 v20, {KC+4096}, v20")
    a("ds_write_b128 v20, v[16:19]")
    a(f"s_lshl_b32 s6, s{sW}, 2"); a(f"s_add_u32 s6, s6, {FL}"); a(f"v_mov_b32 v{vFO_}, s6")
    a(f"ds_write_b32 v{vFO_}, v16")
    a(f"s_lshl_b32 s6, s{sG}, 2"); a(f"v_add_u32 v20, s6, v21")
    a(f"s_xor_b32 s6, s{sW}, 4"); a("v_mov_b32 v22, s6")
    a("v_cmp_eq_u32 vcc, 1, v14"); a("s_nop 1"); a("v_cndmask_b32 v20, v20, v22, vcc")
    a(f"v_lshlrev_b32 v{vFA_}, 2, v20"); a(f"v_add_u32 v{vFA_}, {FL}, v{vFA_}")
    a(f"v_add_u32 v{vLK}, s{sGB}, v{vDM}")
    a("v_bfe_u32 v20, v13, 2, 1"); a("v_mul_u32_u24 v20, 12, v20")
    a("v_lshrrev_b32 v22, 3, v13"); a("v_lshl_add_u32 v20, v22, 2, v20"); a("v_add_u32 v20, v20, v21")
    a("v_mov_b32 v22, 20"); a("v_cmp_le_u32 vcc, 20, v13"); a("s_nop 1"); a("v_cndmask_b32 v20, v20, v22, vcc")
    a(f"v_mul_u32_u24 v{vLV}, 336, v14"); a(f"v_lshl_add_u32 v{vLV}, v20, 4, v{vLV}"); a(f"v_add_u32 v{vLV}, s{sGB}, v{vLV}")
    a(f"v_mov_b32 v{vAK}, v{vLK}"); a(f"v_mov_b32 v{vAV}, v{vLV}")
    a("s_cmp_eq_u32 s84, 2"); a("s_cselect_b32 s6, 39, 1063")
    a("v_sub_u32 v20, s6, v13"); a("v_lshlrev_b32 v22, 3, v14"); a("v_sub_u32 v20, v20, v22")
    a("v_and_b32 v22, 3, v20"); a("v_sub_u32 v20, v20, v22"); a(f"v_mul_u32_u24 v22, {KCC}, v22")
    a(f"v_lshl_add_u32 v{vCA}, v20, 1, v22")
    a(f"s_mul_i32 s6, s83, {KCH}"); a(f"s_add_u32 s6, s6, {KC}"); a(f"v_add_u32 v{vCA}, s6, v{vCA}")
    a("s_cmp_eq_u32 s84, 1"); a("s_cselect_b32 s6, 512, 0"); a(f"s_add_u32 s6, s6, {UP+PS+16}")
    a(f"s_mul_i32 s7, s83, {UCH}"); a("s_add_u32 s6, s6, s7")
    a(f"v_mul_u32_u24 v20, {PS}, v14"); a(f"v_lshlrev_b32 v{vCB}, 4, v13"); a(f"v_sub_u32 v{vCB}, v{vCB}, v20"); a(f"v_add_u32 v{vCB}, s6, v{vCB}")
    for i in range(16):
        a(f"v_mov_b32 v{O[0]+i}, 0"); a(f"v_mov_b32 v{O[1]+i}, 0"); a(f"v_mov_b32 v{CACC+i}, 0")
    for i in range(4): a(f"v_mov_b32 v{P+4+i}, 0"); a(f"v_mov_b32 v{V2[1]+i}, 0")
    a("s_waitcnt vmcnt(4) lgkmcnt(0)")
    a("s_barrier")
    def tile_off(it): return (it >> 1) * RB, (it & 1)
    a(f"ds_read_b128 {R(K1[0],4)}, v{vAK}")
    a(f"ds_read_b128 {R(K2[0],4)}, v{vAK} offset:2048")
    a(f"ds_read_b128 {R(V1[0],4)}, v{vAV} offset:3072")
    a(f"ds_read_b128 {R(V2[0],4)}, v{vAV} offset:{3072+672}")
    a(f"ds_read_b64 {R(CA[0],2)}, v{vCA}"); a(f"ds_read_b64 {R(CA[0]+2,2)}, v{vCA} offset:8")
    a(f"ds_read_b128 {R(CB[0],4)}, v{vCB}")
    a("s_waitcnt lgkmcnt(5)")
    for qi in range(2):
        a(f"v_mfma_f32_32x32x16_bf16 {R(S[qi],16)}, {R(K1[0],4)}, {R(Q1[qi],4)}, 0")
        a(f"v_mfma_f32_32x32x8_bf16 {R(S[qi],16)}, {R(K2[0],2)}, {R(Q2[qi],2)}, {R(S[qi],16)}")
    a("s_nop 9")
    for qi in range(2):
        s = S[qi]
        if qi == 1: a("s_nop 0")
        a(f"v_max3_f32 v{s}, v{s}, v{s+1}, v{s+2}")
        for i in range(3, 15, 2): a(f"v_max3_f32 v{s}, v{s}, v{s+i}, v{s+i+1}")
        a(f"v_max_f32 v{s}, v{s}, v{s+15}")
        a(f"v_mov_b32 v{s+1}, v{s}")
        a("s_nop 1")
        a(f"v_permlane32_swap_b32 v{s}, v{s+1}")
        a("s_nop 0")
        a(f"v_max_f32 v{s}, v{s}, v{s+1}")
        for i in range(16): a(f"v_sub_f32 v{NEGM[qi]+i}, 0, v{s}")
    a(f"s_mov_b32 s{sC}, 0"); a(f"s_mov_b32 s{sSlot}, 0")
    a(f"v_subrev_u32 v{vCA}, 64, v{vCA}"); a(f"v_subrev_u32 v{vCB}, 16, v{vCB}")
    a(f"v_mfma_f32_32x32x16_bf16 {R(S[0],16)}, {R(K1[0],4)}, {R(Q1[0],4)}, {R(NEGM[0],16)}")
    a(f"v_mfma_f32_32x32x8_bf16 {R(S[0],16)}, {R(K2[0],2)}, {R(Q2[0],2)}, {R(S[0],16)}")
    a("s_nop 8")
    a("s_branch K2_ENTRY")

    def sub(p):
        q = p & 1; c = q; n = q ^ 1
        lt = p >> 1
        kc = (lt - 1) & 1
        kt_next = lt - 1 if q == 0 else lt
        ks = kt_next & 1
        k2 = K2[(kt_next >> 1) & 1] + 2 * (kt_next & 1)
        E = lambda k: a(f"v_exp_f32 v{S[c]+k}, v{S[c]+k}")
        CV = lambda k: a(f"v_cvt_pk_bf16_f32 v{P+k}, v{S[c]+2*k}, v{S[c]+2*k+1}")
        kprev = kc if q == 1 else kc ^ 1
        rb, tp = tile_off(lt)
        ld = []
        if q == 0:
            ld.append(f"ds_read_b128 {R(K1[lt&1],4)}, v{vAK} offset:{rb + 1024*tp}")
            if tp == 0: ld.append(f"ds_read_b128 {R(K2[(lt>>1)&1],4)}, v{vAK} offset:{rb + 2048}")
        else:
            ld.append(f"ds_read_b128 {R(V1[lt&1],4)}, v{vAV} offset:{rb + 3072 + 1344*tp}")
            ld.append(f"ds_read_b128 {R(V2[lt&1],4)}, v{vAV} offset:{rb + 3072 + 1344*tp + 672}")
        i1 = p + 1
        cld = [f"ds_read_b64 {R(CA[n],2)}, v{vCA} offset:{32*i1}", f"ds_read_b64 {R(CA[n]+2,2)}, v{vCA} offset:{32*i1+8}",
               f"ds_read_b128 {R(CB[n],4)}, v{vCB} offset:{16*(i1>>1) + (2*PS if i1&1 else 0)}"]
        a("s_waitcnt lgkmcnt(0)")
        a(f"v_mfma_f32_32x32x16_bf16 {R(S[n],16)}, {R(K1[ks],4)}, {R(Q1[n],4)}, {R(NEGM[n],16)}")
        a(cld[0]); a(cld[1])
        for k in range(4): E(k)
        a(f"v_mfma_f32_32x32x16_bf16 {R(O[n],16)}, {R(V2[kprev],4)}, {R(P+4,4)}, {R(O[n],16)}")
        for l in ld: a(l)
        for k in range(4, 8): E(k)
        a(f"v_mfma_f32_32x32x8_bf16 {R(S[n],16)}, {R(k2,2)}, {R(Q2[n],2)}, {R(S[n],16)}")
        a(cld[2])
        for k in range(4): CV(k)
        E(8); E(9)
        a(f"v_mfma_f32_32x32x16_bf16 {R(CACC,16)}, {R(CA[q],4)}, {R(CB[q],4)}, {R(CACC,16)}")
        if p == 7: a(f"ds_read_b32 v{vF_}, v{vFA_}")
        if p == 5:
            a("s_waitcnt vmcnt(0)")
            a(f"s_add_u32 s{sC}, s{sC}, 1")
            a(f"v_mov_b32 v{vT_}, s{sC}")
            a(f"ds_write_b32 v{vFO_}, v{vT_}")
        for k in range(10, 14): E(k)
        a(f"v_mfma_f32_32x32x16_bf16 {R(O[c],16)}, {R(V1[kc],4)}, {R(P,4)}, {R(O[c],16)}")
        E(14); E(15)
        for k in range(4, 8): CV(k)

    a.raw(".p2align 6")
    a.label("K2_LOOP")
    a("s_mov_b32 s7, 0x40000")
    a.label("K2_POLL")
    a("s_waitcnt lgkmcnt(0)")
    a(f"v_cmp_gt_u32 vcc, s{sC}, v{vF_}")
    a(f"s_add_u32 s{sSlot}, s{sSlot}, 0")
    a("s_cmp_eq_u32 vcc_lo, 0")
    a("s_cbranch_scc1 K2_GO")
    a(f"ds_read_b32 v{vF_}, v{vFA_}")
    a("s_sub_u32 s7, s7, 1")
    a("s_cbranch_scc0 K2_POLL")
    a.label("K2_GO")
    a("s_cmp_eq_u32 vcc_hi, 0")
    a("s_cbranch_scc1 K2_HI")
    a("s_setprio 0")
    a("s_branch K2_PRD")
    a.label("K2_HI")
    a("s_setprio 1")
    a.label("K2_PRD")
    a(f"s_add_u32 s{sSlot}, s{sSlot}, {SLOT}"); a(f"s_cmp_eq_u32 s{sSlot}, {3*SLOT}"); a(f"s_cselect_b32 s{sSlot}, 0, s{sSlot}")
    a(f"v_add_u32 v{vAK}, s{sSlot}, v{vLK}"); a(f"v_add_u32 v{vAV}, s{sSlot}, v{vLV}")
    a(f"v_add_u32 v{vCA}, 256, v{vCA}"); a(f"v_add_u32 v{vCB}, 64, v{vCB}")
    a(f"s_cmp_ge_u32 s{sC}, 7"); a("s_cbranch_scc1 K2_NODMA")
    a(f"s_add_u32 s7, s{sSlot}, {SLOT}"); a(f"s_cmp_eq_u32 s7, {3*SLOT}"); a("s_cselect_b32 s7, 0, s7")
    a(f"s_add_u32 s7, s7, s{sDst}")
    kv_dma(7)
    a.label("K2_NODMA")
    sub(0); sub(1)
    a(f"s_cmp_eq_u32 s{sC}, 8"); a("s_cbranch_scc1 K2_DONE")
    a.label("K2_ENTRY")
    for p in range(2, 8): sub(p)
    a("s_branch K2_LOOP")
    a.label("K2_DONE")
    a("s_nop 0")
    a(f"v_mfma_f32_32x32x16_bf16 {R(O[1],16)}, {R(V2[1],4)}, {R(P+4,4)}, {R(O[1],16)}")
    a("v_and_b32 v13, 31, v0"); a("v_lshrrev_b32 v14, 5, v0")
    a("v_lshlrev_b32 v16, 6, v13"); a("v_lshl_add_u32 v16, v14, 3, v16")
    a("s_mul_i32 s6, s86, 6144"); a("s_lshl_b32 s7, s84, 11"); a("s_add_u32 s6, s6, s7"); a(f"s_add_u32 s6, s6, {AT_OFF}")
    for jj in range(4):
        a(f"v_cvt_pk_bf16_f32 v{20+2*jj}, v{CACC+4*jj}, v{CACC+4*jj+1}")
        a(f"v_cvt_pk_bf16_f32 v{21+2*jj}, v{CACC+4*jj+2}, v{CACC+4*jj+3}")
        a(f"buffer_store_dwordx2 {R(20+2*jj,2)}, v16, s[20:23], s6 offen offset:{16*jj}")
    a(f"s_cmp_eq_u32 s{sG}, 0"); a("s_cbranch_scc1 K2_NOSWAP")
    for i in range(13): a(f"v_swap_b32 v{O[0]+i}, v{O[1]+i}")
    a(f"v_swap_b32 v{NEGM[0]}, v{NEGM[1]}")
    for i in range(4): a(f"v_mov_b32 v{Q1[0]+i}, v{Q1[1]+i}")
    for i in range(2): a(f"v_mov_b32 v{Q2[0]+i}, v{Q2[1]+i}")
    a.label("K2_NOSWAP")
    a(f"v_mov_b32 v{O[1]+13}, v{NEGM[1]}")
    a(f"s_mul_i32 s6, s{sW3}, 3072"); a(f"s_add_u32 s6, s6, {2*SLOT}")
    a(f"s_add_u32 s7, s6, s{sGB}"); a(f"v_add_u32 v16, s7, v{vDM}")
    a(f"s_sub_u32 s7, {GS}, s{sGB}"); a("s_add_u32 s7, s7, s6"); a(f"v_add_u32 v17, s7, v{vDM}")
    a(f"s_lshl_b32 s6, s{sW}, 9"); a(f"s_add_u32 s7, s6, {LM}"); a("v_lshlrev_b32 v18, 3, v0"); a("v_add_u32 v19, s7, v18")
    a("s_xor_b32 s6, s6, 2048"); a(f"s_add_u32 s7, s6, {LM}"); a("v_add_u32 v18, s7, v18")
    for i in range(3): a(f"ds_write_b128 v16, {R(O[1]+4*i,4)} offset:{1024*i}")
    a(f"ds_write_b64 v19, {R(O[1]+12,2)}")
    a("s_waitcnt lgkmcnt(0)")
    a("s_barrier")
    for i in range(3): a(f"ds_read_b128 {R(O[1]+4*i,4)}, v17 offset:{1024*i}")
    a(f"ds_read_b64 {R(O[1]+12,2)}, v18")
    a("s_waitcnt lgkmcnt(0)")
    a(f"v_min_f32 v20, v{NEGM[0]}, v{O[1]+13}")
    a(f"v_sub_f32 v21, v20, v{NEGM[0]}"); a(f"v_sub_f32 v22, v20, v{O[1]+13}")
    a("v_exp_f32 v21, v21"); a("v_exp_f32 v22, v22")
    a(f"v_max_f32 v23, v{O[0]+12}, v{O[1]+12}")
    a(f"v_mul_f32 v24, v21, v{O[0]+12}"); a(f"v_fma_f32 v24, v22, v{O[1]+12}, v24")
    a("v_rcp_f32 v24, v24")
    a("s_nop 0")
    a("v_mul_f32 v24, v24, v200")
    a("v_mul_f32 v21, v21, v24"); a("v_mul_f32 v22, v22, v24")
    for i in range(12):
        a(f"v_mul_f32 v{O[0]+i}, v21, v{O[0]+i}")
    for i in range(12):
        a(f"v_fma_f32 v{O[0]+i}, v22, v{O[1]+i}, v{O[0]+i}")
    for i in range(6): a(f"v_cvt_pk_bf16_f32 v{28+i}, v{O[0]+2*i}, v{O[0]+2*i+1}")
    a("v_mul_u32_u24 v16, 24, v14"); a("v_add_u32 v16, v16, v15")
    a(f"s_mul_i32 s6, s{sG}, {32*1280}"); a("s_add_u32 s6, s6, s79"); a(f"s_add_u32 s6, s6, {O_OFF}")
    a("buffer_store_dwordx4 v[28:31], v16, s[20:23], s6 offen")
    a("buffer_store_dwordx2 v[32:33], v197, s[20:23], s6 offen offset:16")
    a.label("K2_END")
    a("s_endpgm")

def k3():
    FL = 102400
    kstart("out_kernel", "K3_END")
    a("s_movk_i32 s74, 160")
    a("s_waitcnt lgkmcnt(0)")
    srd(12, P_WO, 819200); srd(20, P_WS, WS_SIZE); srd(24, P_OUT, 2621440)
    a(f"s_cmp_eq_u32 s{sW}, 4"); a("s_cbranch_scc1 K3_LOADER")
    AF = 208
    a("v_and_b32 v12, 3, v0"); a("v_bfe_u32 v13, v0, 2, 2"); a("v_mul_u32_u24 v13, 20, v13"); a("v_add_u32 v12, v12, v13")
    a("v_mul_u32_u24 v12, 6144, v12")
    a("v_bfe_u32 v13, v0, 4, 1"); a("v_lshl_add_u32 v12, v13, 4, v12")
    a("v_lshrrev_b32 v14, 5, v0")
    a(f"s_cmp_ge_u32 s{sR}, 16"); a("s_cselect_b32 s75, 1, 0")
    a("v_mul_u32_u24 v15, s75, v14"); a("v_lshl_add_u32 v12, v15, 11, v12")
    a(f"s_mul_i32 s6, s{sJ}, {80*6144}"); a(f"s_lshl_b32 s7, s{sR}, 7"); a("s_add_u32 s6, s6, s7")
    a(f"s_lshl_b32 s7, s{sW}, 5"); a("s_add_u32 s6, s6, s7"); a(f"s_add_u32 s6, s6, {AT_OFF}")
    for ct in range(5):
        a(f"buffer_load_dwordx4 {R(AF+4*ct,4)}, v12, s[20:23], s6 offen")
        a(f"s_add_u32 s6, s6, {4*6144}")
    a(f"s_lshl_b32 s6, s{sR}, 6"); a(f"s_lshl_b32 s7, s{sW}, 4"); a("s_add_u32 s6, s6, s7"); a("s_lshl_b32 s6, s6, 2"); a(f"s_add_u32 s6, s6, {G_OFF}")
    a("v_and_b32 v19, 15, v0"); a("v_lshlrev_b32 v16, 2, v19")
    a("buffer_load_dword v20, v16, s[20:23], s6 offen")
    a(f"s_mov_b32 s76, {O_OFF}")
    a("v_lshlrev_b32 v13, 3, v13"); a("v_sub_u32 v21, v19, v13")
    a("s_xor_b32 s75, s75, 1"); a("v_mul_u32_u24 v15, s75, v14"); a("v_lshl_add_u32 v21, v15, 5, v21")
    x_issue(20, "s76")
    w_dma_setup(sW)
    w_dma_issue(sW, 12)
    flag_setup(FL, sW)
    tr_addr_setup()
    a("s_waitcnt lgkmcnt(0)"); a("s_barrier")
    a("s_waitcnt vmcnt(40)")
    a("v_lshrrev_b32 v22, 16, v20"); a("v_and_b32 v23, 1, v21"); a("v_lshlrev_b32 v23, 4, v23"); a("v_lshlrev_b32 v22, v23, v22")
    a("v_ashrrev_i32 v21, 1, v21"); a("v_mov_b32 v23, 0")
    for i in range(4):
        a(f"v_cmp_eq_u32 vcc, {i}, v21"); a("s_nop 1"); a(f"v_cndmask_b32 v{24+i}, v23, v22, vcc")
    a("s_nop 1")
    for ct in range(5):
        a(f"v_mfma_f32_16x16x32_bf16 {R(ACC+4*ct,4)}, {R(AF+4*ct,4)}, v[24:27], 0")
    gemm_main(0, 1, first_c_zero=False)
    a("v_lshrrev_b32 v12, 4, v0"); a("v_mul_u32_u24 v12, 24, v12"); a(f"v_add_u32 v12, v12, v{vXO}")
    a(f"s_mul_i32 s6, s{sJ}, 160")
    a("s_nop 3")
    for i in range(10): a(f"v_cvt_pk_bf16_f32 v{XF+i}, v{ACC+2*i}, v{ACC+2*i+1}")
    a(f"buffer_store_dwordx4 {R(XF,4)}, v12, s[24:27], s6 offen")
    a(f"buffer_store_dwordx4 {R(XF+4,4)}, v12, s[24:27], s6 offen offset:16")
    a(f"buffer_store_dwordx2 {R(XF+8,2)}, v12, s[24:27], s6 offen offset:32")
    a("s_endpgm")
    a.label("K3_LOADER")
    w_dma_setup(sW)
    w_dma_issue(sW, 12)
    flag_setup(FL, sW)
    a("s_waitcnt lgkmcnt(0)"); a("s_barrier")
    loader_signals(0, 1)
    a("s_waitcnt lgkmcnt(0)")
    a.label("K3_END")
    a("s_endpgm")

def desc(name, vg):
    return f""".amdhsa_kernel {name}
  .amdhsa_next_free_vgpr {vg}
  .amdhsa_next_free_sgpr 102
  .amdhsa_accum_offset {vg}
  .amdhsa_group_segment_fixed_size 0
  .amdhsa_kernarg_size 128
  .amdhsa_user_sgpr_count 2
  .amdhsa_user_sgpr_kernarg_segment_ptr 1
  .amdhsa_system_sgpr_workgroup_id_x 1
.end_amdhsa_kernel
"""

def main(out):
    ref = open(f"cdna_kernels/{NAME}.s.ref").read().splitlines()
    hdr = [l for l in ref if l.startswith(';') and '@launch' not in l]
    hdr += ["; @launch kernel=prep_kernel grid=(256,1,1) block=(512,1,1) lds=161856",
            "; @launch kernel=attn_kernel grid=(256,1,1) block=(512,1,1) lds=146240",
            "; @launch kernel=out_kernel grid=(256,1,1) block=(320,1,1) lds=102464"]
    a.raw('.amdgcn_target "amdgcn-amd-amdhsa--gfx950"'); a.raw(".text")
    k1(); k2(); k3()
    errs = hazard.check(hdr + a.L)
    for e in errs: print("HAZARD", e)
    txt = "\n".join(hdr + a.L) + '\n.section .rodata,"a"\n'
    for n, vg in (("prep_kernel", 256), ("attn_kernel", 208), ("out_kernel", 232)):
        txt += ".p2align 6\n" + desc(n, vg)
    open(out, "w").write(txt)

if __name__ == "__main__":
    main(sys.argv[1] if len(sys.argv) > 1 else f"cdna_kernels/{NAME}.s")
```

```python
import sys, math, struct
sys.path.insert(0, 'gen')
import hazard

NAME = "gated_mix__ssm_conv_s4d__grouped_kv_mqa__prompt"
def f32(x): return "0x%08x" % struct.unpack('<I', struct.pack('<f', x))[0]
LOG2E = math.log2(math.e)
LOG2E_HI = struct.unpack('<f', struct.pack('<f', LOG2E))[0]
LOG2E_LO = LOG2E - LOG2E_HI

O_OFF = 0x0
UT_OFF = 0x280000
AT_OFF = 0x500000
KV_OFF = 0x8C0000
G_OFF = 0x8F0000
F1_OFF = 0x900000
F2_OFF = 0x902000
EP_OFF = 0x904000
ST_OFF = 0xE10000
WS_SIZE = 0x1000000
RB_ = 6144
KIMG = 16128; KCOPY = 4224
KCB = [0, 23808, 32256]
SLOTS = [[8448, 40704, 52992], [65280, 77568, 89856]]
RC = 48384; RSTEP = 9216; NRING = 6
RB = 103680; WKV = RB + 20480
UIMG = RB; UCH = 14848; UCP = 7424
RQ = 152832; FL = 163072
LDS_SIZE = 163840
FL_KV = FL; FL_FREE = FL + 16; FL_FULL = FL + 32; FL_CNT1 = FL + 36; FL_CNT2 = FL + 40; FL_AT = FL + 48; FL_LOOP = FL + 64
LX = 155648
WO_SEG = [0, 102400]; AT_IMG = 65280

STAMP = False
OPT = set()
class Asm:
    def __init__(self): self.L = []; self.n = 0
    def __call__(self, s): self.L.append("    " + s)
    def label(self, n): self.L.append(n + ":")
    def raw(self, s): self.L.append(s)
    def uid(self, p): self.n += 1; return f"{p}_{self.n}"
a = Asm()
def R(b, n): return f"v[{b}:{b+n-1}]"
def SR(b, n): return f"s[{b}:{b+n-1}]"

P_U, P_LA, P_AI, P_CR, P_CI, P_LDT, P_DS, P_BX = 40, 42, 44, 46, 48, 50, 52, 54
P_WQ, P_WK, P_WV, P_WO, P_GATE, P_OUT, P_DBG, P_WS = 56, 58, 60, 62, 64, 66, 68, 70
sW, sR, sJ = 3, 4, 5
X_, WQ_, WKV_, WS_, WO_, OUT_, GATE_ = 8, 12, 16, 20, 24, 28, 32
sTAG, sS0 = 36, 37

def stamp(idx):
    if not STAMP: return
    a("s_memrealtime s[96:97]"); a("s_memtime s[98:99]")
    a("s_waitcnt lgkmcnt(0)")
    a(f"v_writelane_b32 v254, s96, {idx}"); a(f"v_writelane_b32 v255, s98, {idx}")
def stamp_flush(idx):
    if not STAMP: return
    a("s_waitcnt vmcnt(0)")
    stamp(idx)
    a(f"s_lshl_b32 s96, s2, 3"); a(f"s_add_u32 s96, s96, s{sW}"); a("s_lshl_b32 s96, s96, 8")
    a(f"s_add_u32 s96, s96, {ST_OFF}")
    a("v_lshlrev_b32 v253, 3, v0")
    a("s_mov_b64 exec, 0xffffffff")
    a(f"buffer_store_dwordx2 v[254:255], v253, {SR(WS_,4)}, s96 offen")

def srd(d, p, size):
    a(f"s_mov_b32 s{d}, s{p}"); a(f"s_mov_b32 s{d+1}, s{p+1}")
    a(f"s_mov_b32 s{d+2}, {size}"); a(f"s_mov_b32 s{d+3}, 0x00020000")
def to_bf16_f32(v):
    a(f"v_cvt_pk_bf16_f32 v{v}, v{v}, v{v}")
    a(f"v_lshlrev_b32 v{v}, 16, v{v}")
def exp_acc(d, x, t, sL, sLlo, sLn2):
    a(f"v_mul_f32 v{d}, s{sL}, v{x}")
    a(f"v_fma_f32 v{t}, v{x}, s{sL}, -v{d}")
    a(f"v_fma_f32 v{t}, v{x}, s{sLlo}, v{t}")
    a(f"v_exp_f32 v{d}, v{d}")
    a(f"v_mul_f32 v{t}, s{sLn2}, v{t}")
    a(f"v_fma_f32 v{d}, v{d}, v{t}, v{d}")
def gswz(d, s, t):
    a(f"v_sub_u32 v{d}, 0, v{s}"); a(f"v_and_b32 v{d}, 3, v{d}")

def lds_poll(vaddr, vtmp, val, sleep=0):
    l = a.uid("LP"); d = a.uid("LPD")
    a("s_mov_b32 s7, 0x40000")
    a.label(l)
    a(f"ds_read_b32 v{vtmp}, v{vaddr}")
    a("s_sub_u32 s7, s7, 1")
    a("s_waitcnt lgkmcnt(0)")
    a(f"v_cmp_gt_u32 vcc, {val}, v{vtmp}")
    a(f"s_cbranch_scc1 {d}")
    a(f"s_cbranch_vccnz {l}")
    a.label(d)

def publish(cnt_addr, nwaves, foff, vt):
    d = a.uid("PUB")
    a(f"v_mov_b32 v{vt}, {cnt_addr}"); a(f"v_mov_b32 v{vt+1}, 1")
    a("s_mov_b64 exec, 1")
    a(f"ds_add_rtn_u32 v{vt+2}, v{vt}, v{vt+1}")
    a("s_lshr_b32 s6, s2, 2"); a("s_lshl_b32 s6, s6, 6"); a("s_and_b32 s7, s2, 3"); a("s_lshl_b32 s7, s7, 2"); a("s_add_u32 s6, s6, s7")
    a(f"s_add_u32 s6, s6, {foff}")
    a(f"v_mov_b32 v{vt}, 0"); a(f"v_mov_b32 v{vt+1}, s{sTAG}")
    a("s_waitcnt lgkmcnt(0)")
    a(f"v_readfirstlane_b32 s7, v{vt+2}")
    a("s_nop 0")
    a(f"s_cmp_lg_u32 s7, {nwaves-1}"); a(f"s_cbranch_scc1 {d}")
    a(f"buffer_store_dword v{vt+1}, v{vt}, {SR(WS_,4)}, s6 offen sc1")
    a.label(d)
    a("s_mov_b64 exec, -1")

def tag_load(v):
    a(f"v_mov_b32 v{v}, 0"); a(f"s_mov_b32 s6, {EP_OFF}")
    a(f"buffer_load_dword v{v}, v{v}, {SR(WS_,4)}, s6 offen sc1")
def tag_finish(v):
    a(f"v_readfirstlane_b32 s{sTAG}, v{v}")
    a("s_nop 0")
    a(f"s_mul_i32 s{sTAG}, s{sTAG}, 1664525"); a(f"s_add_u32 s{sTAG}, s{sTAG}, 1013904223")

def kernel():
    name = NAME + "_kernel"
    a.raw(f".globl {name}"); a.raw(".p2align 8"); a.raw(f".type {name},@function"); a.label(name)
    a("s_cmp_ge_u32 s2, 256")
    a("s_cbranch_scc1 K_END")
    if STAMP: a("v_mov_b32 v254, 0"); a("v_mov_b32 v255, 0")
    stamp(0)
    a("s_load_dwordx16 s[40:55], s[0:1], 0")
    a("s_load_dwordx16 s[56:71], s[0:1], 64")
    a("s_getpc_b64 s[38:39]")
    a("v_lshrrev_b32 v1, 6, v0")
    a("v_lshlrev_b32 v2, 2, v0")
    a("v_and_b32 v0, 63, v0")
    a(f"v_readfirstlane_b32 s{sW}, v1")
    a("v_min_u32 v2, 764, v2"); a("v_mov_b32 v3, 0")
    a(f"v_add_u32 v2, {FL}, v2")
    a("ds_write_b32 v2, v3")
    a(f"s_and_b32 s{sR}, s2, 7"); a(f"s_lshl_b32 s{sR}, s{sR}, 2")
    a("s_bfe_u32 s6, s2, 0x20003"); a(f"s_add_u32 s{sR}, s{sR}, s6")
    a(f"s_lshr_b32 s{sJ}, s2, 5")
    a(f"s_mul_i32 s7, s{sJ}, 5"); a("s_add_u32 s7, s7, 1"); a("s_lshr_b32 s7, s7, 1")
    a("s_mul_i32 s6, s6, 5"); a(f"s_add_u32 s{sS0}, s6, s7")
    a(f"s_sub_u32 s6, s{sS0}, 20"); a(f"s_cmp_ge_u32 s{sS0}, 20"); a(f"s_cselect_b32 s{sS0}, s6, s{sS0}")
    a(f"s_cmp_eq_u32 s{sW}, 7"); a("s_cbranch_scc1 R_LOAD")
    a(f"s_cmp_ge_u32 s{sW}, 4"); a("s_cbranch_scc1 R_KD")

    a("v_lshrrev_b32 v2, 2, v0"); a("v_lshrrev_b32 v3, 4, v0"); gswz(4, 3, 0)
    a("v_and_b32 v5, 3, v0"); a("v_xor_b32 v4, v4, v5")
    a(f"s_lshl_b32 s6, s{sR}, 6"); a(f"s_lshr_b32 s72, s{sJ}, 1"); a("s_lshl_b32 s7, s72, 4"); a("s_add_u32 s73, s6, s7")
    a("v_add_u32 v2, s73, v2"); a("v_mul_u32_u24 v2, 1280, v2"); a("v_lshl_add_u32 v2, v4, 4, v2")
    a("v_lshlrev_b32 v6, 4, v0")
    a(f"s_mul_i32 s74, s{sW}, 320"); a(f"s_mul_i32 s75, s{sW}, 5120"); a(f"s_add_u32 s75, s75, {RB}")
    a(f"s_mul_i32 s76, s{sW}, 7168")
    a(f"s_and_b32 s77, s{sJ}, 1")
    a("s_waitcnt lgkmcnt(0)")
    a("s_barrier")
    srd(X_, P_U, 2621440)
    a("s_cmp_eq_u32 s77, 0")
    a(f"s_cselect_b32 s{WKV_}, s{P_WK}, s{P_WV}"); a(f"s_cselect_b32 s{WKV_+1}, s{P_WK+1}, s{P_WV+1}")
    a(f"s_mov_b32 s{WKV_+2}, 25600"); a(f"s_mov_b32 s{WKV_+3}, 0x00020000")
    for i in range(5):
        a("s_mov_b32 m0, s75"); a("s_add_u32 s75, s75, 1024")
        a(f"buffer_load_dwordx4 v2, {SR(X_,4)}, s74 offen lds")
        a("s_add_u32 s74, s74, 64")
    a(f"s_add_u32 m0, s76, {WKV}"); a("s_nop 0")
    for i in range(4): a(f"buffer_load_dwordx4 v6, {SR(WKV_,4)}, s76 offen offset:{1024*i} lds")
    a("s_add_u32 s76, s76, 4096"); a(f"s_add_u32 m0, s76, {WKV}"); a("s_nop 0")
    for i in range(3): a(f"buffer_load_dwordx4 v6, {SR(WKV_,4)}, s76 offen offset:{1024*i} lds")
    srd(WS_, P_WS, WS_SIZE); srd(GATE_, P_GATE, 1280)
    a(f"s_mov_b32 m0, {RQ+8192}"); a(f"s_cmp_lg_u32 s{sW}, 3"); a("s_cbranch_scc1 G_NOGATE")
    a(f"buffer_load_dwordx4 v6, {SR(GATE_,4)}, 0 offen lds")
    a(f"buffer_load_dwordx4 v6, {SR(GATE_,4)}, 0 offen offset:1024 lds")
    a.label("G_NOGATE")
    tag_load(7)
    vXA, vA1, vA2, vFO, vT, vF, vFA, vSA = 8, 9, 10, 11, 12, 13, 14, 15
    a("v_and_b32 v16, 15, v0")
    a("v_lshrrev_b32 v17, 2, v16"); gswz(17, 17, 0); a("v_xor_b32 v17, v17, v3")
    a("v_lshlrev_b32 v18, 6, v16"); a("v_lshl_add_u32 v18, v17, 4, v18")
    a("v_bfe_u32 v19, v0, 2, 2"); a("v_lshl_add_u32 v19, v3, 3, v19")
    a("v_and_b32 v20, 1, v3"); a("v_lshrrev_b32 v21, 1, v3")
    a("v_lshl_add_u32 v22, v20, 2, v19"); a("v_xor_b32 v23, 4, v22")
    a("v_mul_u32_u24 v24, 40, v5"); a(f"v_add_u32 v24, {RC+4096}, v24"); a("s_movk_i32 s6, 160")
    a(f"v_mad_u32_u24 v{vA1}, v22, s6, v24"); a(f"v_mad_u32_u24 v{vA2}, v23, s6, v24")
    a(f"s_lshl_b32 s6, s{sW}, 10"); a(f"s_add_u32 s6, s6, {RC}"); a(f"v_add_u32 v{vXA}, s6, v18")
    a(f"s_lshl_b32 s6, s{sW}, 2"); a(f"s_add_u32 s6, s6, {FL_KV}"); a(f"v_mov_b32 v{vFO}, s6")
    a(f"v_lshlrev_b32 v{vFA}, 2, v5"); a(f"v_add_u32 v{vFA}, {FL_KV}, v{vFA}")
    a(f"v_add_u32 v18, {RB}, v18")
    a(f"s_mul_i32 s78, s{sR}, {RB_}"); a(f"s_add_u32 s78, s78, {KV_OFF}")
    a("s_lshr_b32 s79, s72, 1"); a("s_and_b32 s80, s72, 1")
    a(f"v_mov_b32 v{vT}, 1")
    stamp(1)
    a("s_waitcnt vmcnt(0)")
    a(f"ds_write_b32 v{vFO}, v{vT}")
    tag_finish(7)
    stamp(2)
    a(f"s_cmp_ge_u32 s{sW}, 2"); a("s_cbranch_scc1 G_UT")
    a(f"s_cmp_eq_u32 s{sW}, 0"); a("s_cselect_b32 s6, 3, 1"); a("s_cselect_b32 s7, 0, 32")
    a("v_and_b32 v22, s6, v5"); a("v_lshlrev_b32 v22, 3, v22"); a("v_mad_u32_u24 v22, v19, 40, v22")
    a(f"s_add_u32 s7, s7, {WKV}"); a("v_add_u32 v22, s7, v22")
    EACC = 28; FRX = 32
    def kv_loop(mode):
        def rd(s):
            f = FRX + 8*(s % 8)
            a(f"ds_read_b128 {R(f,4)}, v18 offset:{1024*s}")
            if mode == 'G': a(f"ds_read_b128 {R(f+4,4)}, v22 offset:{64*s}")
            else:
                a(f"ds_read_b64_tr_b16 {R(f+4,2)}, v22 offset:{1280*s}")
                a(f"ds_read_b64_tr_b16 {R(f+6,2)}, v22 offset:{1280*s+160}")
        per = 2 if mode == 'G' else 3
        D = 4
        for s in range(D): rd(s)
        for s in range(20):
            a(f"s_waitcnt lgkmcnt({per*min(D-1, 19-s)})")
            f = FRX + 8*(s % 8)
            cc = "0" if s == 0 else R(EACC, 4)
            if mode == 'V': a(f"v_mfma_f32_16x16x32_bf16 {R(EACC,4)}, {R(f,4)}, {R(f+4,4)}, {cc}")
            else: a(f"v_mfma_f32_16x16x32_bf16 {R(EACC,4)}, {R(f+4,4)}, {R(f,4)}, {cc}")
            if s + D < 20: rd(s + D)
        a("s_nop 7")
    a("s_cmp_eq_u32 s77, 1"); a("s_cbranch_scc1 G_V")
    a("v_and_b32 v23, 3, v16"); a("v_bfe_u32 v24, v16, 2, 1"); a("v_lshl_add_u32 v23, v24, 3, v23")
    a("v_bfe_u32 v24, v16, 3, 1"); a("v_lshl_add_u32 v23, v24, 2, v23")
    a("s_lshl_b32 s6, s80, 4"); a("v_add_u32 v23, s6, v23")
    a(f"v_lshlrev_b32 v{vSA}, 4, v23"); a(f"v_lshl_add_u32 v{vSA}, v21, 9, v{vSA}")
    a(f"s_cmp_eq_u32 s{sW}, 0"); a("s_cselect_b32 s6, 10, 3"); a("s_cselect_b32 s7, 0, 2048"); a("s_cselect_b32 s84, 3, 30")
    a("s_lshl_b32 s6, s79, s6"); a("s_add_u32 s6, s6, s7")
    a("v_lshlrev_b32 v24, s84, v20"); a(f"v_add3_u32 v{vSA}, v{vSA}, s6, v24")
    lds_poll(vFA, vF, 1)
    stamp(3)
    kv_loop('K')
    a("s_branch G_KVST")
    a.label("G_V")
    a(f"s_lshl_b32 s6, s{sW}, 4"); a("v_add_u32 v23, s6, v16")
    a("s_mul_i32 s6, s79, 1344"); a("s_mul_i32 s7, s80, 672"); a("s_add_u32 s6, s6, s7"); a("s_add_u32 s6, s6, 3072")
    a(f"v_mul_u32_u24 v{vSA}, 336, v21"); a(f"v_lshl_add_u32 v{vSA}, v23, 4, v{vSA}"); a(f"v_lshl_add_u32 v{vSA}, v20, 3, v{vSA}")
    a(f"v_add_u32 v{vSA}, s6, v{vSA}")
    a("v_add_u32 v24, 11, v23"); a("v_lshrrev_b32 v24, 5, v24"); a(f"v_lshl_or_b32 v{vSA}, v24, 30, v{vSA}")
    a("v_cmp_eq_u32 s[82:83], 20, v23")
    lds_poll(vFA, vF, 1)
    stamp(3)
    kv_loop('V')
    for i in range(4): a(f"v_cndmask_b32 v{EACC+i}, v{EACC+i}, 1.0, s[82:83]")
    a.label("G_KVST")
    a(f"v_cvt_pk_bf16_f32 v{EACC}, v{EACC}, v{EACC+1}")
    a(f"v_cvt_pk_bf16_f32 v{EACC+1}, v{EACC+2}, v{EACC+3}")
    a(f"buffer_store_dwordx2 {R(EACC,2)}, v{vSA}, {SR(WS_,4)}, s78 offen sc1")
    a("s_branch G_GEMM")
    a.label("G_UT")
    a(f"s_cmp_lg_u32 s{sW}, 3"); a("s_cbranch_scc1 G_UT2")
    a("s_cmp_lg_u32 s77, 0"); a("s_cbranch_scc1 G_UT2")
    a(f"v_lshlrev_b32 v22, 4, v3"); a(f"v_add_u32 v22, {RQ+8192}, v22")
    a(f"v_add_u32 v{vSA}, s73, v16"); a(f"v_lshlrev_b32 v{vSA}, 2, v{vSA}"); a(f"v_lshl_add_u32 v{vSA}, v20, 13, v{vSA}")
    lds_poll(vFA, vF, 1)
    kv_loop('G')
    to_bf16_f32(EACC)
    a(f"v_mul_f32 v{EACC}, {f32(-LOG2E)}, v{EACC}")
    a(f"v_exp_f32 v{EACC}, v{EACC}")
    a("v_cmp_eq_u32 vcc, 1, v20")
    a(f"v_add_f32 v{EACC}, 1.0, v{EACC}")
    a(f"v_rcp_f32 v{EACC}, v{EACC}")
    a("s_nop 0")
    to_bf16_f32(EACC)
    a(f"v_sub_f32 v{EACC+1}, 1.0, v{EACC}")
    to_bf16_f32(EACC+1)
    a(f"v_cndmask_b32 v{EACC}, v{EACC}, v{EACC+1}, vcc")
    a(f"s_mov_b32 s6, {G_OFF}")
    a(f"buffer_store_dword v{EACC}, v{vSA}, {SR(WS_,4)}, s6 offen sc1")
    a.label("G_UT2")
    a(f"s_and_b32 s81, s{sW}, 1")
    a("v_lshrrev_b32 v22, 1, v5"); a("s_lshl_b32 s6, s81, 1"); a("v_add_u32 v22, s6, v22")
    a("v_lshlrev_b32 v23, 1, v3"); gswz(24, 23, 0); a("v_xor_b32 v24, v24, v22")
    a("v_add_u32 v23, 1, v23"); gswz(25, 23, 0); a("v_xor_b32 v25, v25, v22")
    a("v_and_b32 v26, 1, v0"); a("v_lshlrev_b32 v26, 3, v26"); a("v_lshl_add_u32 v26, v19, 6, v26"); a(f"v_add_u32 v26, {RC}, v26")
    a("v_lshl_add_u32 v24, v24, 4, v26"); a("v_lshl_add_u32 v25, v25, 4, v26")
    a("s_lshl_b32 s6, s81, 12"); a(f"s_add_u32 s6, s6, {RQ}")
    a("v_lshlrev_b32 v22, 7, v16"); a("v_lshl_add_u32 v22, v3, 4, v22"); a("v_add_u32 v22, s6, v22")
    a("v_add_u32 v23, s6, v6")
    a("v_lshrrev_b32 v26, 3, v0"); a("v_lshlrev_b32 v26, 12, v26"); a("v_and_b32 v27, 7, v0"); a("v_lshl_add_u32 v26, v27, 4, v26")
    a(f"v_mov_b32 v27, {FL_FULL}")
    a(f"s_lshl_b32 s82, s{sR}, 7"); a("s_lshl_b32 s6, s81, 16"); a("s_add_u32 s82, s82, s6"); a(f"s_add_u32 s82, s82, {UT_OFF}")
    a(f"s_mov_b32 s83, s{sS0}")
    lds_poll(27, vF, 3)
    stamp(3)
    for u in range(3):
        for half in range(2):
            f = FRX + 8*u + 4*half
            a(f"ds_read_b64_tr_b16 {R(f,2)}, v24 offset:{RSTEP*u + 2048*half}")
            a(f"ds_read_b64_tr_b16 {R(f+2,2)}, v25 offset:{RSTEP*u + 2048*half + 256}")
    for u in range(3):
        so = 2048*(u & 1)
        a(f"s_waitcnt lgkmcnt({[8,0,0][u]})")
        a(f"ds_write_b128 v22, {R(FRX+8*u,4)} offset:{so}")
        a(f"ds_write_b128 v22, {R(FRX+8*u+4,4)} offset:{so+64}")
        a(f"ds_read_b128 {R(64+8*u,4)}, v23 offset:{so}")
        a(f"ds_read_b128 {R(64+8*u+4,4)}, v23 offset:{so+1024}")
    for u in range(3):
        a("s_lshl_b32 s6, s83, 17"); a("s_add_u32 s6, s6, s82"); a("s_add_u32 s7, s6, 0x8000")
        a("s_add_u32 s83, s83, 1"); a("s_cmp_eq_u32 s83, 20"); a("s_cselect_b32 s83, 0, s83")
        if u == 2: a("s_waitcnt lgkmcnt(0)")
        a(f"buffer_store_dwordx4 {R(64+8*u,4)}, v26, {SR(WS_,4)}, s6 offen sc1")
        a(f"buffer_store_dwordx4 {R(64+8*u+4,4)}, v26, {SR(WS_,4)}, s7 offen sc1")
    a.label("G_GEMM")
    stamp(4)
    ACC = 96; FS = [116, 140]
    for i in range(20): a(f"v_mov_b32 v{ACC+i}, 0")
    a(f"v_add_u32 v{vFO}, 16, v{vFO}")
    a(f"v_mov_b32 v{vFA}, {FL_FULL}")
    sI, sFull, sSl = 84, 85, 86
    a(f"s_mov_b32 s{sI}, 0"); a(f"s_mov_b32 s{sFull}, 0"); a(f"s_mov_b32 s{sSl}, 0")
    def g_reads(fs):
        ok = a.uid("GOK"); lp = a.uid("GLP")
        a(f"s_cmp_lt_u32 s{sI}, s{sFull}"); a(f"s_cbranch_scc1 {ok}")
        a("s_mov_b32 s7, 0x40000")
        a.label(lp)
        a(f"ds_read_b32 v{vF}, v{vFA}")
        a("s_sub_u32 s7, s7, 1"); a(f"s_cbranch_scc1 {ok}")
        a("s_waitcnt lgkmcnt(0)")
        a(f"v_readfirstlane_b32 s{sFull}, v{vF}")
        a("s_nop 0")
        a(f"s_cmp_lt_u32 s{sI}, s{sFull}"); a(f"s_cbranch_scc0 {lp}")
        a.label(ok)
        a(f"v_add_u32 v16, s{sSl}, v{vXA}"); a(f"v_add_u32 v17, s{sSl}, v{vA1}"); a(f"v_add_u32 v18, s{sSl}, v{vA2}")
        a(f"ds_read_b128 {R(fs,4)}, v16")
        for ct in range(5):
            a(f"ds_read_b64_tr_b16 {R(fs+4+4*ct,2)}, v17 offset:{8*ct}")
            a(f"ds_read_b64_tr_b16 {R(fs+6+4*ct,2)}, v18 offset:{8*ct}")
        a(f"s_add_u32 s{sSl}, s{sSl}, {RSTEP}"); a(f"s_cmp_eq_u32 s{sSl}, {RSTEP*NRING}"); a(f"s_cselect_b32 s{sSl}, 0, s{sSl}")
        a(f"s_add_u32 s{sI}, s{sI}, 1")
    def g_free():
        a("s_waitcnt lgkmcnt(0)")
        a(f"v_mov_b32 v{vT}, s{sI}"); a(f"ds_write_b32 v{vFO}, v{vT}")
    def g_mfma(fs):
        for ct in range(5):
            a(f"v_mfma_f32_16x16x32_bf16 {R(ACC+4*ct,4)}, {R(fs+4+4*ct,4)}, {R(fs,4)}, {R(ACC+4*ct,4)}")
    g_reads(FS[0])
    a.label("G_LOOP")
    g_free(); g_reads(FS[1]); g_mfma(FS[0])
    g_free()
    a(f"s_cmp_lg_u32 s{sI}, 4"); a("s_cbranch_scc1 G_NOPUB")
    a("s_waitcnt vmcnt(0)")
    publish(FL_CNT1, 4, F1_OFF, 20)
    a.label("G_NOPUB")
    a(f"s_cmp_eq_u32 s{sI}, 20"); a("s_cbranch_scc1 G_LAST")
    g_reads(FS[0]); g_mfma(FS[1])
    a("s_branch G_LOOP")
    a.label("G_LAST")
    g_mfma(FS[1])
    stamp(5)
    a("v_and_b32 v16, 15, v0"); a(f"s_lshl_b32 s6, s{sW}, 4"); a("v_add_u32 v16, s6, v16"); a("v_lshl_add_u32 v16, v3, 6, v16")
    a("v_mul_u32_u24 v16, 40, v16"); a(f"v_add_u32 v16, {RQ}, v16")
    a(f"s_mov_b32 s7, {f32(20**-0.5 * LOG2E)}")
    a("s_nop 1")
    for i in range(20): a(f"v_mul_f32 v{ACC+i}, s7, v{ACC+i}")
    for i in range(10): a(f"v_cvt_pk_bf16_f32 v{FS[0]+i}, v{ACC+2*i}, v{ACC+2*i+1}")
    for i in range(5): a(f"ds_write_b64 v16, {R(FS[0]+2*i,2)} offset:{8*i}")
    a("s_branch MERGE")

    a.label("R_LOAD")
    a("v_lshlrev_b32 v2, 7, v0")
    a("global_load_dword v10, v2, s[38:39]")
    a("v_add_u32 v2, 8192, v2")
    a("global_load_dword v11, v2, s[38:39]")
    a("v_add_u32 v2, 8192, v2")
    a("global_load_dword v8, v2, s[38:39]")
    a("v_lshrrev_b32 v2, 2, v0"); a("v_lshrrev_b32 v3, 4, v0"); gswz(4, 3, 0)
    a("v_and_b32 v5, 3, v0"); a("v_xor_b32 v4, v4, v5")
    a(f"s_lshl_b32 s6, s{sR}, 6"); a("v_add_u32 v2, s6, v2"); a("v_mul_u32_u24 v2, 1280, v2"); a("v_lshl_add_u32 v12, v4, 4, v2")
    for i in range(1, 4): a(f"v_add_u32 v{12+i}, {20480*i}, v12")
    a(f"s_mul_i32 s72, s{sJ}, 160")
    a("s_waitcnt lgkmcnt(0)")
    a("s_barrier")
    for c in range(5):
        a(f"v_add_u32 v2, {64*c}, v0")
        a("v_mul_u32_u24 v3, 0x199a, v2"); a("v_lshrrev_b32 v3, 16, v3")
        a("v_mul_u32_u24 v4, 10, v3"); a("v_sub_u32 v4, v2, v4")
        a("v_lshrrev_b32 v5, 1, v3"); a("v_and_b32 v5, 4, v5"); a("v_xor_b32 v3, v3, v5")
        a("v_mul_u32_u24 v3, 1280, v3"); a("v_lshl_add_u32 v4, v4, 4, v3"); a(f"v_add_u32 v{16+c}, s72, v4")
    a("s_waitcnt lgkmcnt(0)")
    srd(X_, P_U, 2621440); srd(WQ_, P_WQ, 819200); srd(WS_, P_WS, WS_SIZE)
    tag_load(9)
    sK, sM = 73, 74
    a(f"s_mov_b32 s{sK}, s{sS0}"); a(f"s_mov_b32 s{sM}, {RC}")
    def l_issue():
        a(f"s_lshl_b32 s75, s{sK}, 6"); a(f"s_mul_i32 s76, s{sK}, 40960")
        a(f"s_mov_b32 m0, s{sM}")
        a(f"s_add_u32 s{sK}, s{sK}, 1")
        for i in range(9):
            if i < 4: a(f"buffer_load_dwordx4 v{12+i}, {SR(X_,4)}, s75 offen lds")
            else: a(f"buffer_load_dwordx4 v{12+i}, {SR(WQ_,4)}, s76 offen lds")
            if i < 8: a("s_add_u32 m0, m0, 1024"); a("s_nop 0")
        a(f"s_cmp_eq_u32 s{sK}, 20"); a(f"s_cselect_b32 s{sK}, 0, s{sK}")
        a(f"s_add_u32 s{sM}, s{sM}, {RSTEP}"); a(f"s_cmp_eq_u32 s{sM}, {RC+RSTEP*NRING}"); a(f"s_cselect_b32 s{sM}, {RC}, s{sM}")
    a(f"v_mov_b32 v21, {FL_FULL}")
    a("v_and_b32 v22, 3, v0"); a("v_lshlrev_b32 v22, 2, v22"); a(f"v_add_u32 v22, {FL_FREE}, v22")
    a("v_mov_b32 v24, 0")
    sIs, sLa = 77, 78
    a(f"s_mov_b32 s{sIs}, 0"); a(f"s_mov_b32 s{sLa}, 0"); a("s_mov_b32 s84, 0x80000")
    a.label("L_LOOP")
    a(f"s_cmp_ge_u32 s{sIs}, 20"); a("s_cbranch_scc1 L_WAIT")
    a("s_waitcnt lgkmcnt(0)")
    a(f"v_add_u32 v23, {NRING}, v24")
    a(f"v_cmp_ge_u32 vcc, s{sIs}, v23")
    a("ds_read_b32 v24, v22")
    a("s_cbranch_vccnz L_WAIT")
    l_issue()
    a(f"s_add_u32 s{sIs}, s{sIs}, 1")
    a("s_branch L_LOOP")
    a.label("L_WAIT")
    a("s_sub_u32 s84, s84, 1"); a("s_cbranch_scc1 L_END")
    a(f"s_sub_u32 s6, s{sIs}, s{sLa}")
    a("s_cmp_eq_u32 s6, 0"); a("s_cbranch_scc1 L_LOOP")
    for n in range(NRING, 1, -1):
        a(f"s_cmp_lt_u32 s6, {n}"); a(f"s_cbranch_scc1 L_W{n-1}")
        a(f"s_waitcnt vmcnt({9*(n-1)})"); a("s_branch L_SIG")
        a.label(f"L_W{n-1}")
    a("s_waitcnt vmcnt(0)")
    a.label("L_SIG")
    a(f"s_add_u32 s{sLa}, s{sLa}, 1")
    a(f"v_mov_b32 v23, s{sLa}"); a("ds_write_b32 v21, v23")
    a(f"s_cmp_lt_u32 s{sLa}, 19"); a("s_cbranch_scc1 L_LOOP")
    a(f"s_cmp_lt_u32 s{sIs}, 20"); a("s_cbranch_scc1 L_LOOP")
    a.label("L_END")
    stamp(2)
    tag_finish(9)
    a("v_lshlrev_b32 v26, 6, v0"); a(f"s_mov_b32 s79, {F1_OFF}")
    a(f"buffer_load_dwordx4 v[32:35], v26, {SR(WS_,4)}, s79 offen sc1")
    a("s_waitcnt vmcnt(1)")
    a("v_mov_b32 v23, 20"); a("ds_write_b32 v21, v23")
    for i in range(4): a(f"v_mov_b32 v{28+i}, 0")
    a("v_lshlrev_b32 v25, 4, v0"); a(f"v_add_u32 v25, {UIMG}, v25")
    for k in range(6):
        for o in (0, 1024, 1280): a(f"ds_write_b128 v25, v[28:31] offset:{UCP*k + o}")
    a("v_mul_u32_u24 v27, 0x1c72, v0"); a("v_lshrrev_b32 v27, 16, v27"); a("v_mul_u32_u24 v36, 9, v27"); a("v_sub_u32 v36, v0, v36")
    a("v_lshlrev_b32 v27, 7, v27"); a("v_lshl_add_u32 v27, v36, 4, v27")
    a("s_and_b32 s80, s2, 1"); a("s_lshr_b32 s81, s2, 1"); a("s_mul_i32 s81, s81, 5"); a("s_lshl_b32 s80, s80, 1"); a("s_add_u32 s81, s81, s80")
    a("s_lshl_b32 s81, s81, 12"); a(f"s_add_u32 s81, s81, {UT_OFF-2}")
    a("s_mov_b32 s7, 0x4000")
    a.label("L_GP")
    a("s_waitcnt vmcnt(0)")
    a(f"v_xor_b32 v32, s{sTAG}, v32"); a(f"v_xor_b32 v33, s{sTAG}, v33"); a(f"v_xor_b32 v34, s{sTAG}, v34"); a(f"v_xor_b32 v35, s{sTAG}, v35")
    a("v_or3_b32 v32, v32, v33, v34"); a("v_or_b32 v32, v32, v35")
    a("v_cmp_ne_u32 vcc, 0, v32")
    a("s_sub_u32 s7, s7, 1"); a("s_cbranch_scc1 L_GPD")
    a("s_cbranch_vccz L_GPD")
    a("s_sleep 6")
    a(f"buffer_load_dwordx4 v[32:35], v26, {SR(WS_,4)}, s79 offen sc1")
    a("s_branch L_GP")
    a.label("L_GPD")
    stamp(3)
    a("s_waitcnt lgkmcnt(0)")
    a("s_mov_b32 exec_hi, 0x7fffffff")
    a(f"s_mov_b32 s82, {UIMG + 2304}")
    a("s_mov_b32 s77, 6")
    a.label("L_UD")
    a("s_mov_b32 m0, s82"); a("s_mov_b32 s83, s81")
    for i in range(5):
        a(f"buffer_load_dwordx4 v27, {SR(WS_,4)}, s83 offen sc1 lds")
        if i < 4: a("s_add_u32 m0, m0, 1008"); a("s_add_u32 s83, s83, 896")
    a(f"s_add_u32 s82, s82, {UCP}")
    a("s_and_b32 s6, s77, 1"); a("s_cmp_eq_u32 s6, 0"); a("s_cselect_b32 s6, 2, 4094"); a("s_add_u32 s81, s81, s6")
    a("s_sub_u32 s77, s77, 1"); a("s_cmp_lg_u32 s77, 0"); a("s_cbranch_scc1 L_UD")
    a("s_mov_b64 exec, -1")
    a("s_cmp_lg_u32 s2, 0"); a("s_cbranch_scc1 L_NOEP")
    a(f"v_mov_b32 v23, s{sTAG}"); a(f"s_mov_b32 s6, {EP_OFF}")
    a(f"buffer_store_dword v23, v28, {SR(WS_,4)}, s6 offen sc1")
    a.label("L_NOEP")
    a("s_branch MERGE")

    a.label("R_KD")
    a(f"s_sub_u32 s88, s{sW}, 4")
    a("s_and_b32 s6, s2, 1"); a("s_lshr_b32 s89, s2, 1"); a("s_mul_i32 s89, s89, 5"); a("s_lshl_b32 s6, s6, 1"); a("s_add_u32 s89, s89, s6")
    a("s_add_u32 s89, s89, s88")
    a("v_lshlrev_b32 v1, 2, v0")
    a("s_lshl_b32 s90, s89, 8")
    a("s_and_b32 s91, s89, 0xfffffffe"); a("s_lshl_b32 s91, s91, 1")
    a("s_waitcnt lgkmcnt(0)")
    a("s_barrier")
    for i, p in enumerate((P_LA, P_AI, P_CR, P_CI)):
        srd(72+4*i, p, 163840)
        a(f"buffer_load_dword v{12+i}, v1, {SR(72+4*i,4)}, s90 offen")
    a(f"s_load_dword s92, {SR(P_LDT,2)}, s91")
    a(f"s_load_dword s93, {SR(P_DS,2)}, s91")
    srd(WS_, P_WS, WS_SIZE)
    tag_load(11)
    sL, sLlo, sLn2, sB = 40, 41, 42, 43
    a(f"s_mov_b32 s{sL}, {f32(LOG2E_HI)}"); a(f"s_mov_b32 s{sLlo}, {f32(LOG2E_LO)}"); a(f"s_mov_b32 s{sLn2}, {f32(math.log(2))}")
    a(f"s_mul_i32 s{sB}, s88, {KIMG}")
    a(f"v_add_u32 v1, s{sB}, v1")
    KA = 72
    for i in range(32): a(f"v_mov_b32 v{KA+i}, 0")
    a("v_and_b32 v5, 31, v0"); a("v_lshrrev_b32 v6, 5, v0"); a("v_lshlrev_b32 v6, 4, v6"); a(f"v_add_u32 v6, s{sB}, v6")
    a("s_movk_i32 s44, 272")
    a("v_mad_u32_u24 v2, v5, s44, v6")
    a("v_and_b32 v7, 7, v5"); a("v_sub_u32 v7, 7, v7"); a("v_cvt_f32_u32 v7, v7")
    a("v_lshrrev_b32 v8, 3, v5")
    a("v_min_u32 v9, 2, v8"); a("v_sub_u32 v9, 0, v9"); a("v_ldexp_f32 v9, v7, v9"); a("v_rndne_f32 v9, v9"); a("v_cvt_u32_f32 v9, v9")
    a("v_lshlrev_b32 v10, 3, v8"); a(f"s_mov_b32 s6, {hex((32+0) | (32+8)<<8 | (32+13)<<16 | (32+16)<<24)}")
    a("v_bfe_u32 v10, s6, v10, 8"); a("v_add_u32 v9, v9, v10")
    a("v_mad_u32_u24 v3, v9, s44, v6")
    a("v_mul_f32 v9, 0x3e000000, v7"); a("v_rndne_f32 v9, v9"); a("v_cvt_u32_f32 v9, v9")
    a("v_lshl_add_u32 v9, v8, 1, v9"); a("v_add_u32 v9, 51, v9")
    a("v_mad_u32_u24 v4, v9, s44, v6")
    a("s_waitcnt lgkmcnt(0)")
    a("s_and_b32 s6, s89, 1"); a("s_xor_b32 s6, s6, 1"); a("s_lshl_b32 s6, s6, 4")
    a("s_lshl_b32 s92, s92, s6"); a("s_and_b32 s92, s92, 0xffff0000")
    a("s_lshl_b32 s93, s93, s6"); a("s_and_b32 s93, s93, 0xffff0000")
    a("v_mov_b32 v5, s92")
    exp_acc(6, 5, 7, sL, sLlo, sLn2)
    to_bf16_f32(6)
    a("v_add_f32 v7, v6, v6")
    a("s_mov_b32 s45, 2")
    stamp(1)
    a("s_waitcnt vmcnt(0)")
    tag_finish(11)
    stamp(2)
    a.label("KD_LOOP")
    a("v_and_b32 v16, 0xffff0000, v12")
    exp_acc(17, 16, 18, sL, sLlo, sLn2)
    to_bf16_f32(17)
    a("v_mul_f32 v17, v17, v6")
    a(f"v_mul_f32 v17, {f32(-LOG2E)}, v17")
    a("v_and_b32 v16, 0xffff0000, v13")
    a("v_mul_f32 v16, v16, v6")
    a("v_mul_f32 v16, 0.15915494, v16")
    W1, W2, W4, W8, W16, W256 = 20, 22, 24, 26, 28, 30
    H0 = 32; HB = [H0] + [34+2*i for i in range(7)]
    EO, EE, HX, HY = 48, 50, 52, 54
    T = [56, 58, 60, 62]; PK = [64, 65, 66, 67, 68, 69, 70, 71]
    for w, p in ((W1, 1.0), (W8, 8.0), (W256, 256.0)):
        a(f"v_mul_f32 v18, {f32(p)}, v17"); a(f"v_mul_f32 v19, {f32(p)}, v16")
        a("v_exp_f32 v18, v18"); a("v_fract_f32 v19, v19")
        a(f"v_cos_f32 v{w}, v19"); a(f"v_sin_f32 v{w+1}, v19")
        a("s_nop 0")
        a(f"v_mul_f32 v{w}, v{w}, v18"); a(f"v_mul_f32 v{w+1}, v{w+1}, v18")
    a(f"v_and_b32 v{H0}, 0xffff0000, v14"); a(f"v_and_b32 v{H0+1}, 0xffff0000, v15")
    a(f"v_mul_f32 v{H0}, v{H0}, v7"); a(f"v_mul_f32 v{H0+1}, v{H0+1}, v7")
    def cm1(t, x, w): a(f"v_pk_mul_f32 {R(t,2)}, {R(x,2)}, {R(w,2)} op_sel:[0,0] op_sel_hi:[1,0]")
    def cm2(d, x, w, t): a(f"v_pk_fma_f32 {R(d,2)}, {R(x,2)}, {R(w,2)}, {R(t,2)} op_sel:[1,1,0] op_sel_hi:[0,1,1] neg_lo:[1,0,0]")
    def out(pk, x, conj): a(f"v_cvt_pk_bf16_f32 v{pk}, v{x}, {'-' if conj else ''}v{x+1}")
    def wr(pk, row): a(f"ds_write_b32 v1, v{pk} offset:{272*row}")
    cm1(T[0], W1, W1); cm1(T[1], W8, W8); cm2(W2, W1, W1, T[0]); cm2(W16, W8, W8, T[1])
    a(f"v_mov_b32 v{PK[0]}, 0x3f80"); out(PK[1], W8, False)
    cm1(T[0], W2, W2); out(PK[2], W16, False); cm2(W4, W2, W2, T[0]); out(PK[3], H0, True)
    wr(PK[0], 0); wr(PK[1], 1); wr(PK[2], 2); wr(PK[3], 32)
    sEO = [(EO, W8 if i == 0 else EO, W16, 3+2*i, False) for i in range(15)]
    sEE = [(EE, W16 if i == 0 else EE, W16, 4+2*i, False) for i in range(14)]
    hb_row = [32, 40, 45, 48, 51, 53, 55, 57]
    sX = [(HX, H0 if i == 0 else HX, W1, 33+i, True) for i in range(7)]
    sX += [(HX, HB[1] if i == 0 else HX, W2, 41+i, True) for i in range(4)]
    sX += [(HX, HB[2] if i == 0 else HX, W4, 46+i, True) for i in range(2)]
    sY = [(HB[b], HB[b-1], W256, hb_row[b], True) for b in range(1, 8)]
    sY += [(HY, HB[b], W8, hb_row[b]+1, True) for b in range(4, 8)]
    sY += [(HY, HB[3] if i == 0 else HY, W4, 49+i, True) for i in range(2)]
    for g in range(15):
        ts = [s[g] for s in (sEO, sEE, sX, sY) if g < len(s)]
        pk = PK[4*((g+1) & 1):]
        for i, t in enumerate(ts): cm1(T[i], t[1], t[2])
        for i, t in enumerate(ts): cm2(t[0], t[1], t[2], T[i])
        for i, t in enumerate(ts): out(pk[i], t[0], t[4])
        for i, t in enumerate(ts): wr(pk[i], t[3])
    for i in range(4): a(f"v_lshlrev_b32 v{12+i}, 16, v{12+i}")
    a("s_waitcnt lgkmcnt(0)")
    FR = 104
    def rd(s):
        a(f"ds_read_b128 {R(FR+12*s,4)}, v2 offset:{32*s}")
        a(f"ds_read_b128 {R(FR+12*s+4,4)}, v3 offset:{32*s}")
        a(f"ds_read_b128 {R(FR+12*s+8,4)}, v4 offset:{32*s}")
    for s in range(4): rd(s)
    for s in range(8):
        a(f"s_waitcnt lgkmcnt({9 if s+4 < 8 else 3*(7-s)})")
        a(f"v_mfma_f32_32x32x16_bf16 {R(KA,16)}, {R(FR+12*s+4,4)}, {R(FR+12*s,4)}, {R(KA,16)}")
        a(f"v_mfma_f32_32x32x16_bf16 {R(KA+16,16)}, {R(FR+12*s+8,4)}, {R(FR+12*s,4)}, {R(KA+16,16)}")
        if s + 4 < 8: rd(s+4)
    a("s_sub_u32 s45, s45, 1"); a("s_cmp_lg_u32 s45, 0"); a("s_cbranch_scc1 KD_LOOP")
    stamp(3)
    a("s_cmp_eq_u32 s88, 1"); a(f"s_cselect_b32 s6, {KCB[1]}, s{sB}")
    a("v_mov_b32 v16, 0"); a("v_mov_b32 v17, 0"); a("v_mov_b32 v18, 0")
    a("v_writelane_b32 v18, s93, 32")
    a("s_mov_b32 s46, 0xaaaaaaaa"); a("s_mov_b32 s47, 0xaaaaaaaa")
    a("v_and_b32 v5, 31, v0"); a("v_lshlrev_b32 v9, 4, v5"); a("v_sub_u32 v9, 496, v9")
    a("v_lshrrev_b32 v8, 5, v0"); a("v_lshl_add_u32 v9, v8, 3, v9"); a("v_add_u32 v9, s6, v9")
    a(f"v_add_u32 v10, {KCOPY-4}, v9")
    a(f"v_mul_u32_u24 v19, {KCOPY-4}, v8"); a("v_min_u32 v5, 30, v5"); a("v_lshl_add_u32 v19, v5, 2, v19"); a("v_add_u32 v19, s6, v19")
    a("ds_write_b32 v19, v16 offset:4096")
    a(f"v_add_f32 v{KA+3}, v{KA+3}, v18")
    for jj in range(4):
        a(f"v_cndmask_b32 v{KA+16+4*jj+3}, v{KA+16+4*jj+3}, v{KA+16+4*jj+2}, s[46:47]")
    for b in range(8):
        a(f"v_cvt_pk_bf16_f32 v{20+2*b}, v{KA+4*b}, v{KA+4*b+1}")
        a(f"v_cvt_pk_bf16_f32 v{21+2*b}, v{KA+4*b+2}, v{KA+4*b+3}")
        a(f"ds_write_b64 v9, {R(20+2*b,2)} offset:{512*(7-b)}")
        a(f"ds_write_b32 v10, v{20+2*b} offset:{512*(7-b)}")
        a(f"ds_write_b32 v10, v{21+2*b} offset:{512*(7-b)+4}")

    a.label("MERGE")
    S = [16, 32]; P = 48; O = [56, 72]; NEGM = [88, 104]; Q1 = [120, 124]; Q2 = [128, 130]; CACC = 132
    K1 = [148, 152]; K2 = [156, 160]; V1 = [164, 172]; V2 = [168, 176]; CA = [180, 184]; CB = [188, 192]
    vLV, vAK, vAV, vCA, vCB, vFO_, vFA_, vF_, vT_, vDM = 3, 4, 5, 6, 7, 8, 9, 10, 11, 12
    sG, sW3, sC, sSA, sSB, sSC, sKVsrc, sPc = 72, 73, 74, 75, 76, 77, 78, 79
    stamp(6)
    a(f"s_lshr_b32 s{sG}, s{sW}, 2"); a(f"s_and_b32 s{sW3}, s{sW}, 3")
    a(f"v_lshlrev_b32 v{vDM}, 4, v0")
    a(f"s_cmp_eq_u32 s{sG}, 0")
    for s_, k in ((sSA, 0), (sSB, 1), (sSC, 2)):
        a(f"s_mov_b32 s{s_}, {SLOTS[1][k]}"); a(f"s_cselect_b32 s{s_}, {SLOTS[0][k]}, s{s_}")
    a(f"s_mul_i32 s{sKVsrc}, s{sG}, {16*RB_}"); a(f"s_lshl_b32 s{sPc}, s{sW3}, 10")
    a(f"s_add_u32 s{sKVsrc}, s{sKVsrc}, s{sPc}"); a(f"s_add_u32 s{sKVsrc}, s{sKVsrc}, {KV_OFF}")
    def kv_dma(slot_sgpr):
        a(f"s_add_u32 s7, s{slot_sgpr}, s{sPc}")
        for i in range(3):
            a(f"s_add_u32 m0, s7, {4096*i}")
            a(f"s_add_u32 s6, s{sKVsrc}, {4096*i}")
            a(f"buffer_load_dwordx4 v{vDM}, {SR(WS_,4)}, s6 offen sc1 lds")
        a(f"s_add_u32 s{sKVsrc}, s{sKVsrc}, {2*RB_}")
    a("v_and_b32 v13, 31, v0"); a("v_lshrrev_b32 v14, 5, v0")
    a("s_and_b32 s80, s2, 1"); a("s_lshr_b32 s81, s2, 1")
    a("s_lshl_b32 s82, s80, 3"); a(f"s_add_u32 s82, s82, s{sW}"); a("s_min_u32 s82, s82, 14")
    a("s_mul_i32 s83, s82, 43"); a("s_lshr_b32 s83, s83, 7")
    a("s_mul_i32 s84, s83, 3"); a("s_sub_u32 s84, s82, s84")
    a("s_mul_i32 s85, s81, 5"); a("s_add_u32 s86, s85, s83")
    a("s_lshl_b32 s6, s80, 1"); a("s_sub_u32 s83, s83, s6")
    a("s_waitcnt lgkmcnt(0)")
    a("s_barrier")
    stamp(7)
    kv_dma(sSA)
    kv_dma(sSB)
    a(f"s_lshl_b32 s6, s{sR}, 6"); a(f"s_lshl_b32 s7, s{sG}, 5"); a("s_add_u32 s6, s6, s7"); a("s_lshl_b32 s6, s6, 2")
    a(f"s_add_u32 s6, s6, {G_OFF+8192}")
    a("v_lshlrev_b32 v199, 2, v13")
    a(f"buffer_load_dword v200, v199, {SR(WS_,4)}, s6 offen sc1")
    srd(WO_, P_WO, 819200); srd(OUT_, P_OUT, 2621440)
    a("s_lshr_b32 s6, s2, 3"); a("s_mul_i32 s6, s6, 25600"); a(f"s_mul_i32 s7, s{sW}, 3200"); a("s_add_u32 s6, s6, s7")
    a("v_min_u32 v199, 24, v0"); a("v_lshlrev_b32 v199, 7, v199")
    a(f"buffer_load_dword v201, v199, {SR(WO_,4)}, s6 offen")
    a(f"s_mul_i32 s6, s{sW3}, 2560"); a(f"s_add_u32 s6, s6, {RQ}")
    a("v_mul_u32_u24 v20, 40, v13"); a("v_add_u32 v20, s6, v20"); a("v_lshl_add_u32 v21, v14, 4, v20")
    a("v_lshl_or_b32 v20, v14, 18, v20")
    for qi in range(2):
        a(f"ds_read_b64 {R(Q1[qi],2)}, v21 offset:{1280*qi}"); a(f"ds_read_b64 {R(Q1[qi]+2,2)}, v21 offset:{1280*qi+8}")
        a(f"ds_read_b64 {R(Q2[qi],2)}, v20 offset:{1280*qi+32}")
    a(f"s_lshl_b32 s6, s{sW}, 2"); a(f"s_add_u32 s6, s6, {FL_LOOP}"); a(f"v_mov_b32 v{vFO_}, s6")
    a("v_and_b32 v21, 3, v0")
    a(f"s_lshl_b32 s6, s{sG}, 2"); a("v_add_u32 v20, s6, v21")
    a(f"s_xor_b32 s6, s{sW}, 4"); a("v_mov_b32 v22, s6")
    a("v_cmp_eq_u32 vcc, 1, v14"); a("s_nop 1"); a("v_cndmask_b32 v20, v20, v22, vcc")
    a(f"v_lshlrev_b32 v{vFA_}, 2, v20"); a(f"v_add_u32 v{vFA_}, {FL_LOOP}, v{vFA_}")
    a(f"s_and_b32 s6, s{sW3}, 1"); a("s_lshl_b32 s7, s6, 2"); a("s_lshl_b32 s6, s6, 4"); a("s_sub_u32 s6, 16, s6")
    a("v_bfe_u32 v20, v13, 2, 1"); a("v_lshrrev_b32 v22, 3, v13")
    a("v_lshlrev_b32 v20, 3, v20"); a("v_lshl_add_u32 v20, v22, 2, v20"); a("v_add3_u32 v20, v20, v21, s7")
    a("v_add_u32 v22, s6, v21")
    a("v_cmp_le_u32 vcc, 16, v13"); a("s_nop 1"); a("v_cndmask_b32 v20, v20, v22, vcc")
    a("v_mov_b32 v22, 0x4000"); a("v_cmp_le_u32 vcc, 20, v13"); a("s_nop 1"); a("v_cndmask_b32 v20, v20, v22, vcc")
    a("v_and_b32 v23, 27, v13"); a("v_mov_b32 v22, 20"); a("v_cmp_eq_u32 vcc, 24, v23"); a("s_nop 1"); a("v_cndmask_b32 v20, v20, v22, vcc")
    a(f"v_mul_u32_u24 v{vLV}, 336, v14"); a(f"v_lshl_add_u32 v{vLV}, v20, 4, v{vLV}")
    a(f"v_add_u32 v{vAK}, s{sSA}, v{vDM}"); a(f"v_add_u32 v{vAV}, s{sSA}, v{vLV}")
    a("s_cmp_eq_u32 s84, 2"); a("s_cselect_b32 s6, 1024, 0"); a("s_sub_u32 s6, 1094, s6")
    a("v_lshlrev_b32 v20, 1, v13"); a("v_sub_u32 v20, s6, v20"); a("v_lshlrev_b32 v22, 3, v14"); a("v_sub_u32 v20, v20, v22")
    a("v_bfe_u32 v22, v20, 1, 1"); a("v_and_b32 v20, 0xfffffffc, v20"); a(f"v_mul_u32_u24 v22, {KCOPY}, v22")
    a(f"v_lshl_add_u32 v{vCA}, v20, 1, v22")
    a(f"s_mul_i32 s6, s83, {KIMG}"); a("s_cmp_eq_u32 s83, 1"); a(f"s_cselect_b32 s6, {KCB[1]}, s6"); a(f"v_add_u32 v{vCA}, s6, v{vCA}")
    a("s_cmp_eq_u32 s84, 1"); a("s_cselect_b32 s6, 2304, 0"); a(f"s_add_u32 s6, s6, {UIMG+144+16}")
    a(f"s_mul_i32 s7, s83, {UCH}"); a("s_add_u32 s6, s6, s7")
    a("v_and_b32 v20, 15, v0"); a("v_mul_u32_u24 v20, 144, v20"); a("v_bfe_u32 v22, v0, 4, 1"); a(f"v_mul_u32_u24 v22, {UCP}, v22")
    a(f"v_add3_u32 v{vCB}, v20, v22, s6"); a("v_lshlrev_b32 v20, 4, v14"); a(f"v_sub_u32 v{vCB}, v{vCB}, v20")
    for i in range(16):
        a(f"v_mov_b32 v{O[0]+i}, 0"); a(f"v_mov_b32 v{O[1]+i}, 0"); a(f"v_mov_b32 v{CACC+i}, 0")
    for i in range(4): a(f"v_mov_b32 v{P+4+i}, 0"); a(f"v_mov_b32 v{V2[1]+i}, 0")
    a(f"v_add_u32 v22, {SLOTS[0][0]}, v{vDM}")
    a("s_waitcnt vmcnt(5)")
    a(f"s_cmp_lg_u32 s{sW}, 7"); a("s_cbranch_scc1 M_NOFIX")
    a("v_min_u32 v20, 2, v0"); a(f"v_mul_u32_u24 v20, {UCH}, v20"); a(f"v_add_u32 v20, {UIMG+2304}, v20")
    a(f"ds_write_b16 v20, v{CACC}")
    a.label("M_NOFIX")
    a("s_waitcnt lgkmcnt(0)")
    stamp(8)
    a("s_barrier")
    stamp(9)
    a(f"ds_read_b128 {R(K1[1],4)}, v22"); a(f"ds_read_b128 {R(K2[1],4)}, v22 offset:2048")
    a(f"ds_read_b128 {R(K1[0],4)}, v{vAK}")
    a(f"ds_read_b128 {R(K2[0],4)}, v{vAK} offset:2048")
    a(f"ds_read_b128 {R(V1[0],4)}, v{vAV} offset:3072")
    a(f"ds_read_b128 {R(V2[0],4)}, v{vAV} offset:{3072+672}")
    a(f"ds_read2_b64 {R(CA[0],4)}, v{vCA} offset0:0 offset1:1")
    a(f"ds_read_b128 {R(CB[0],4)}, v{vCB}")
    a("s_waitcnt lgkmcnt(6)")
    for qi in range(2):
        a(f"v_mfma_f32_32x32x16_bf16 {R(S[qi],16)}, {R(K1[1],4)}, {R(Q1[qi],4)}, 0")
        a(f"v_mfma_f32_32x32x8_bf16 {R(S[qi],16)}, {R(K2[1],2)}, {R(Q2[qi],2)}, {R(S[qi],16)}")
    a("s_nop 9")
    for qi in range(2):
        s = S[qi]
        a(f"v_max3_f32 v{s}, v{s}, v{s+1}, v{s+2}")
        for i in range(3, 15, 2): a(f"v_max3_f32 v{s}, v{s}, v{s+i}, v{s+i+1}")
        a(f"v_max_f32 v{s}, v{s}, v{s+15}")
        a(f"v_mov_b32 v{s+1}, v{s}")
        a("s_nop 1")
        a(f"v_permlane32_swap_b32 v{s}, v{s+1}")
        a("s_nop 0")
        a(f"v_max_f32 v{s}, v{s}, v{s+1}")
        for i in range(16): a(f"v_sub_f32 v{NEGM[qi]+i}, 0, v{s}")
    a(f"s_mov_b32 s{sC}, 0")
    a(f"v_subrev_u32 v{vCA}, 64, v{vCA}"); a(f"v_subrev_u32 v{vCB}, 144, v{vCB}")
    a("s_waitcnt lgkmcnt(0)")
    a(f"v_mfma_f32_32x32x16_bf16 {R(S[0],16)}, {R(K1[0],4)}, {R(Q1[0],4)}, {R(NEGM[0],16)}")
    a(f"v_mfma_f32_32x32x8_bf16 {R(S[0],16)}, {R(K2[0],2)}, {R(Q2[0],2)}, {R(S[0],16)}")
    a("s_nop 8")
    stamp(10)
    a("s_branch A_ENTRY")

    def sub(p):
        q = p & 1; c = q; n = q ^ 1
        lt = p >> 1
        kc = (lt - 1) & 1
        kt_next = lt - 1 if q == 0 else lt
        ks = kt_next & 1
        k2 = K2[(kt_next >> 1) & 1] + 2 * (kt_next & 1)
        E = lambda k: a(f"v_exp_f32 v{S[c]+k}, v{S[c]+k}")
        CV = lambda k: a(f"v_cvt_pk_bf16_f32 v{P+k}, v{S[c]+2*k}, v{S[c]+2*k+1}")
        kprev = kc if q == 1 else kc ^ 1
        rb, tp = (lt >> 1) * RB_, lt & 1
        ld = []
        if q == 0:
            ld.append(f"ds_read_b128 {R(K1[lt&1],4)}, v{vAK} offset:{rb + 1024*tp}")
            if tp == 0: ld.append(f"ds_read_b128 {R(K2[(lt>>1)&1],4)}, v{vAK} offset:{rb + 2048}")
        else:
            ld.append(f"ds_read_b128 {R(V1[lt&1],4)}, v{vAV} offset:{rb + 3072 + 1344*tp}")
            ld.append(f"ds_read_b128 {R(V2[lt&1],4)}, v{vAV} offset:{rb + 3072 + 1344*tp + 672}")
        i1 = p + 1; i3 = p + 3
        a("s_waitcnt lgkmcnt(0)")
        a(f"v_mfma_f32_32x32x16_bf16 {R(S[n],16)}, {R(K1[ks],4)}, {R(Q1[n],4)}, {R(NEGM[n],16)}")
        a(f"ds_read2_b64 {R(CA[n],4)}, v{vCA} offset0:{4*i1} offset1:{4*i1+1}")
        for k in range(4): E(k)
        a(f"v_mfma_f32_32x32x16_bf16 {R(O[n],16)}, {R(V2[kprev],4)}, {R(P+4,4)}, {R(O[n],16)}")
        for l in ld: a(l)
        for k in range(4, 8): E(k)
        a(f"v_mfma_f32_32x32x8_bf16 {R(S[n],16)}, {R(k2,2)}, {R(Q2[n],2)}, {R(S[n],16)}")
        a(f"ds_read_b128 {R(CB[n],4)}, v{vCB} offset:{144*(i3>>2) + 32*(i3&3)}")
        for k in range(4): CV(k)
        E(8); E(9)
        a(f"v_mfma_f32_32x32x16_bf16 {R(CACC,16)}, {R(CA[q],4)}, {R(CB[q],4)}, {R(CACC,16)}")
        if p == 7: a(f"ds_read_b32 v{vF_}, v{vFA_}")
        if p == 5:
            a("s_waitcnt vmcnt(0)")
            a(f"s_add_u32 s{sC}, s{sC}, 1")
            a(f"v_mov_b32 v{vT_}, s{sC}")
            a(f"ds_write_b32 v{vFO_}, v{vT_}")
        for k in range(10, 14): E(k)
        a(f"v_mfma_f32_32x32x16_bf16 {R(O[c],16)}, {R(V1[kc],4)}, {R(P,4)}, {R(O[c],16)}")
        E(14); E(15)
        for k in range(4, 8): CV(k)

    a.raw(".p2align 6")
    a.label("A_LOOP")
    a("s_mov_b32 s7, 0x40000")
    a.label("A_POLL")
    a("s_waitcnt lgkmcnt(0)")
    a(f"v_cmp_gt_u32 vcc, s{sC}, v{vF_}")
    a(f"s_mov_b32 s6, s{sSA}")
    a("s_cmp_eq_u32 vcc_lo, 0")
    a("s_cbranch_scc1 A_GO")
    a(f"ds_read_b32 v{vF_}, v{vFA_}")
    a("s_sub_u32 s7, s7, 1")
    a("s_cbranch_scc0 A_POLL")
    a.label("A_GO")
    a("s_cmp_eq_u32 vcc_hi, 0")
    a("s_cbranch_scc1 A_HI")
    a("s_setprio 0")
    a("s_branch A_PRD")
    a.label("A_HI")
    a("s_setprio 1")
    a.label("A_PRD")
    a(f"s_mov_b32 s{sSA}, s{sSB}"); a(f"s_mov_b32 s{sSB}, s{sSC}"); a(f"s_mov_b32 s{sSC}, s6")
    a(f"v_add_u32 v{vAK}, s{sSA}, v{vDM}"); a(f"v_add_u32 v{vAV}, s{sSA}, v{vLV}")
    a(f"v_add_u32 v{vCA}, 256, v{vCA}"); a(f"v_add_u32 v{vCB}, 288, v{vCB}")
    a(f"s_cmp_ge_u32 s{sC}, 7"); a("s_cbranch_scc1 A_NODMA")
    kv_dma(sSB)
    a.label("A_NODMA")
    sub(0); sub(1)
    a(f"s_cmp_eq_u32 s{sC}, 8"); a("s_cbranch_scc1 A_DONE")
    a.label("A_ENTRY")
    for p in range(2, 8): sub(p)
    a("s_branch A_LOOP")
    a.label("A_DONE")
    stamp(11)
    a("s_setprio 0")
    a(f"v_mfma_f32_32x32x16_bf16 {R(O[1],16)}, {R(V2[1],4)}, {R(P+4,4)}, {R(O[1],16)}")
    a("v_and_b32 v16, 15, v0"); a("v_lshlrev_b32 v16, 7, v16"); a("v_bfe_u32 v17, v0, 4, 1"); a("v_lshl_add_u32 v16, v17, 6, v16")
    a("v_lshl_add_u32 v16, v14, 3, v16")
    a(f"s_lshl_b32 s6, s{sW3}, 11"); a(f"s_add_u32 s6, s6, s{sSB}")
    a("v_add_u32 v16, s6, v16"); a(f"v_add_u32 v17, s6, v{vDM}")
    for jj in range(4):
        a(f"v_cvt_pk_bf16_f32 v{20+2*jj}, v{CACC+4*jj}, v{CACC+4*jj+1}")
        a(f"v_cvt_pk_bf16_f32 v{21+2*jj}, v{CACC+4*jj+2}, v{CACC+4*jj+3}")
        a(f"ds_write_b64 v16, {R(20+2*jj,2)} offset:{16*jj}")
    a(f"ds_read_b128 v[28:31], v17"); a(f"ds_read_b128 v[32:35], v17 offset:1024")
    a(f"s_cmp_eq_u32 s{sG}, 0"); a("s_cbranch_scc1 T_NOSWAP")
    for i in range(13): a(f"v_swap_b32 v{O[0]+i}, v{O[1]+i}")
    for i in range(4): a(f"v_mov_b32 v{Q1[0]+i}, v{Q1[1]+i}")
    for i in range(2): a(f"v_mov_b32 v{Q2[0]+i}, v{Q2[1]+i}")
    a.label("T_NOSWAP")
    a(f"s_mul_i32 s6, s{sW3}, 3072")
    a(f"s_add_u32 s7, s6, s{sSA}"); a(f"v_add_u32 v16, s7, v{vDM}")
    a(f"s_sub_u32 s7, {SLOTS[0][2]+SLOTS[1][2]}, s{sSA}"); a("s_add_u32 s7, s7, s6"); a(f"v_add_u32 v17, s7, v{vDM}")
    a(f"s_lshl_b32 s6, s{sW}, 8"); a(f"s_add_u32 s7, s6, {LX}"); a("v_lshlrev_b32 v18, 2, v0"); a("v_add_u32 v19, s7, v18")
    a("s_xor_b32 s6, s6, 1024"); a(f"s_add_u32 s7, s6, {LX}"); a("v_add_u32 v18, s7, v18")
    for i in range(3): a(f"ds_write_b128 v16, {R(O[1]+4*i,4)} offset:{1024*i}")
    a(f"ds_write_b32 v19, v{O[1]+12}")
    a("s_mul_i32 s6, s86, 6144"); a("s_lshl_b32 s7, s84, 11"); a("s_add_u32 s6, s6, s7"); a(f"s_add_u32 s6, s6, {AT_OFF}")
    a("s_waitcnt lgkmcnt(4)")
    a(f"buffer_store_dwordx4 v[28:31], v{vDM}, {SR(WS_,4)}, s6 offen sc1")
    a(f"buffer_store_dwordx4 v[32:35], v{vDM}, {SR(WS_,4)}, s6 offen offset:1024 sc1")
    a(f"s_mul_i32 s6, s{sJ}, 80"); a(f"s_mul_i32 s7, s{sW3}, 20"); a("s_add_u32 s87, s6, s7")
    a(f"s_and_b32 s88, s{sW3}, 1")
    a("s_lshl_b32 s6, s88, 2"); a("s_add_u32 s6, s6, s87"); a("s_lshr_b32 s6, s6, 3")
    a("v_add_u32 v36, s6, v14"); a("v_lshrrev_b32 v37, 2, v36"); a("v_lshlrev_b32 v37, 12, v37"); a("v_and_b32 v36, 3, v36")
    a("v_lshl_add_u32 v36, v36, 8, v37")
    a("v_lshrrev_b32 v37, 4, v13"); a("v_lshlrev_b32 v37, 10, v37"); a("v_and_b32 v38, 15, v0"); a("v_lshl_add_u32 v37, v38, 4, v37")
    a("v_add_u32 v36, v36, v37")
    a("s_lshl_b32 s6, s88, 4"); a("s_sub_u32 s6, 16, s6"); a("s_add_u32 s6, s6, s87")
    a("s_lshr_b32 s7, s6, 5"); a("s_lshl_b32 s7, s7, 12"); a("s_bfe_u32 s89, s6, 0x20003"); a("s_lshl_b32 s89, s89, 8"); a("s_add_u32 s7, s7, s89")
    a("s_and_b32 s6, s6, 4"); a("s_lshl_b32 s6, s6, 1"); a("s_add_u32 s7, s7, s6")
    a("v_add_u32 v37, s7, v37"); a("v_lshl_or_b32 v37, v14, 30, v37")
    a(f"s_mul_i32 s89, s{sR}, 81920"); a(f"s_lshl_b32 s6, s{sG}, 11"); a("s_add_u32 s90, s89, s6"); a(f"s_add_u32 s90, s90, {O_OFF}")
    a("v_mul_u32_u24 v39, 0x199a, v0"); a("v_lshrrev_b32 v39, 16, v39"); a("v_mul_u32_u24 v40, 10, v39"); a("v_sub_u32 v40, v0, v40")
    a(f"s_lshl_b32 s6, s{sW}, 2"); a(f"s_lshl_b32 s7, s{sW}, 1"); a("s_and_b32 s7, s7, 4"); a("s_xor_b32 s6, s6, s7")
    a("v_add_u32 v39, s6, v39"); a("v_mul_u32_u24 v39, 1280, v39"); a("v_lshl_add_u32 v39, v40, 4, v39")
    a(f"s_mul_i32 s6, s{sJ}, 160"); a("v_add_u32 v39, s6, v39")
    a("s_waitcnt lgkmcnt(0)")
    stamp(12)
    a("s_barrier")
    stamp(13)
    for i in range(3): a(f"ds_read_b128 {R(O[1]+4*i,4)}, v17 offset:{1024*i}")
    a(f"ds_read_b32 v{O[1]+12}, v18")
    a(f"s_mov_b32 s91, s{sS0}"); a(f"s_mul_i32 s92, s{sW}, 640")
    def wo_issue(i):
        seg = WO_SEG[i // 10] + 5120 * (i % 10)
        a(f"s_add_u32 m0, s92, {seg}"); a("s_mul_i32 s6, s91, 40960")
        a(f"buffer_load_dwordx4 v39, {SR(WO_,4)}, s6 offen lds")
        a("s_add_u32 s91, s91, 1"); a("s_cmp_eq_u32 s91, 20"); a("s_cselect_b32 s91, 0, s91")
    NE = 3
    a("s_mov_b32 exec_hi, 0xff")
    for i in range(NE): wo_issue(i)
    a("s_mov_b64 exec, -1")
    a("s_waitcnt lgkmcnt(0)")
    a(f"v_add_f32 v24, v{O[0]+12}, v{O[1]+12}")
    a("v_rcp_f32 v25, v24")
    for i in range(12): a(f"v_add_f32 v{O[0]+i}, v{O[0]+i}, v{O[1]+i}")
    a("v_mul_f32 v25, v25, v200")
    for i in range(12): a(f"v_mul_f32 v{O[0]+i}, v25, v{O[0]+i}")
    for i in range(6): a(f"v_cvt_pk_bf16_f32 v{44+i}, v{O[0]+2*i}, v{O[0]+2*i+1}")
    a(f"buffer_store_dwordx4 v[44:47], v36, {SR(WS_,4)}, s90 offen sc1")
    a(f"buffer_store_dwordx2 v[48:49], v37, {SR(WS_,4)}, s90 offen sc1")
    a("s_waitcnt vmcnt(0)")
    publish(FL_CNT2, 8, F2_OFF, 20)
    stamp(14)
    a("s_mov_b32 exec_hi, 0xff")
    for i in range(NE, 20): wo_issue(i)
    a("s_mov_b64 exec, -1")
    a(f"s_cmp_lg_u32 s{sW}, 7"); a("s_cbranch_scc1 T_NOPOLL")
    a(f"s_lshl_b32 s6, s{sJ}, 5"); a("v_add_u32 v20, s6, v13")
    a("v_and_b32 v21, 7, v0"); a("s_and_b32 s6, s2, 31"); a("v_lshlrev_b32 v21, 5, v21"); a("v_add_u32 v21, s6, v21")
    a("v_cmp_eq_u32 vcc, 1, v14"); a("s_nop 1"); a("v_cndmask_b32 v20, v20, v21, vcc")
    a("v_lshrrev_b32 v21, 2, v20"); a("v_lshlrev_b32 v21, 6, v21"); a("v_and_b32 v20, 3, v20"); a("v_lshl_add_u32 v20, v20, 2, v21")
    a(f"s_mov_b32 s93, {F2_OFF}"); a("s_mov_b32 s7, 0x4000")
    a.label("T_GP")
    a(f"buffer_load_dword v21, v20, {SR(WS_,4)}, s93 offen sc1")
    a("s_waitcnt vmcnt(0)")
    a(f"v_cmp_ne_u32 vcc, s{sTAG}, v21")
    a("s_sub_u32 s7, s7, 1"); a("s_cbranch_scc1 T_NOPOLL")
    a("s_cbranch_vccz T_NOPOLL")
    a("s_sleep 4")
    a("s_branch T_GP")
    a.label("T_NOPOLL")
    a("s_waitcnt vmcnt(0)")
    stamp(15)
    a("s_barrier")
    stamp(16)
    a(f"s_cmp_lt_u32 s{sW}, 4"); a("s_cbranch_scc1 T_GEMM")
    a("v_lshrrev_b32 v20, 3, v0"); a("v_mul_u32_u24 v20, 6144, v20")
    a("v_and_b32 v21, 7, v0"); a("v_bfe_u32 v22, v0, 3, 3"); a("v_xor_b32 v21, v21, v22"); a("v_lshl_add_u32 v20, v21, 4, v20")
    a(f"s_lshr_b32 s6, s{sW3}, 1")
    a(f"s_cmp_ge_u32 s{sR}, 16"); a("s_cselect_b32 s6, s6, 0"); a("s_lshl_b32 s6, s6, 11")
    a(f"s_mul_i32 s7, s{sJ}, {80*6144}"); a("s_add_u32 s6, s6, s7"); a(f"s_lshl_b32 s7, s{sR}, 7"); a("s_add_u32 s6, s6, s7")
    a(f"s_and_b32 s7, s{sW3}, 1"); a(f"s_mul_i32 s7, s7, {40*6144}"); a("s_add_u32 s6, s6, s7"); a(f"s_add_u32 s6, s6, {AT_OFF}")
    a(f"s_mul_i32 s7, s{sW3}, 5120"); a(f"s_add_u32 m0, s7, {AT_IMG}")
    a(f"s_lshl_b32 s7, s{sW3}, 2"); a(f"s_add_u32 s7, s7, {FL_AT}")
    for i in range(5):
        a(f"buffer_load_dwordx4 v20, {SR(WS_,4)}, s6 offen sc1 lds")
        if i < 4: a("s_add_u32 m0, m0, 1024"); a(f"s_add_u32 s6, s6, {8*6144}")
    a("v_mov_b32 v21, s7"); a("v_mov_b32 v22, 1")
    a("s_waitcnt vmcnt(0)")
    a("ds_write_b32 v21, v22")
    a("s_waitcnt lgkmcnt(0)")
    stamp_flush(20)
    a("s_endpgm")
    a.label("T_GEMM")
    XF = 64; ACC = 144; WF = [164, 184]; AF = 204
    a(f"s_lshl_b32 s6, s{sR}, 6"); a(f"s_lshl_b32 s7, s{sW}, 4"); a("s_add_u32 s94, s6, s7")
    a("s_lshl_b32 s6, s94, 2"); a(f"s_add_u32 s6, s6, {G_OFF}")
    a("v_and_b32 v19, 15, v0"); a("v_lshlrev_b32 v16, 2, v19")
    a(f"s_lshl_b32 s7, s{sW}, 10"); a("s_add_u32 s89, s89, s7"); a(f"s_add_u32 s89, s89, {O_OFF}")
    a(f"s_mov_b32 s91, s{sS0}")
    for s in range(20):
        a("s_lshl_b32 s7, s91, 12"); a("s_add_u32 s7, s7, s89")
        a(f"buffer_load_dwordx4 {R(XF+4*s,4)}, v{vDM}, {SR(WS_,4)}, s7 offen sc1")
        a("s_add_u32 s91, s91, 1"); a("s_cmp_eq_u32 s91, 20"); a("s_cselect_b32 s91, 0, s91")
    a(f"buffer_load_dword v20, v16, {SR(WS_,4)}, s6 offen sc1")
    a("v_lshrrev_b32 v3, 4, v0"); a("v_bfe_u32 v4, v0, 2, 2"); a("v_lshl_add_u32 v5, v3, 3, v4")
    a("v_and_b32 v6, 1, v3"); a("v_lshl_add_u32 v5, v6, 2, v5"); a("v_xor_b32 v7, 4, v5")
    a("v_and_b32 v8, 3, v0"); a("v_mul_u32_u24 v9, 40, v8"); a("s_movk_i32 s6, 160")
    a("v_mad_u32_u24 v10, v5, s6, v9"); a("v_mad_u32_u24 v11, v7, s6, v9")
    a(f"v_add_u32 v17, {WO_SEG[1]}, v10"); a(f"v_add_u32 v18, {WO_SEG[1]}, v11")
    def w_read(s):
        f = WF[s & 1]; r1, r2 = (10, 11) if s < 10 else (17, 18)
        for ct in range(5):
            off = 5120 * (s % 10) + 8 * ct
            a(f"ds_read_b64_tr_b16 {R(f+4*ct,2)}, v{r1} offset:{off}")
            a(f"ds_read_b64_tr_b16 {R(f+4*ct+2,2)}, v{r2} offset:{off}")
    w_read(0)
    a("v_mul_u32_u24 v21, 20, v4"); a("v_add_u32 v21, v21, v8")
    a(f"v_lshl_add_u32 v22, v6, 2, s{sW}")
    a("v_mul_u32_u24 v23, 10240, v14"); a(f"v_add_u32 v23, {AT_IMG}, v23"); a("v_lshl_add_u32 v23, v21, 7, v23")
    a("v_and_b32 v21, 7, v21"); a("v_xor_b32 v21, v21, v22")
    a("v_lshl_add_u32 v24, v21, 4, v23"); a("v_xor_b32 v21, 4, v21"); a("v_lshl_add_u32 v25, v21, 4, v23")
    a("v_lshlrev_b32 v26, 2, v8"); a(f"v_add_u32 v26, {FL_AT}, v26")
    a("v_add_u32 v27, s94, v19"); a("v_mul_u32_u24 v27, 1280, v27"); a("v_mad_u32_u24 v27, v3, 40, v27")
    for s in range(20):
        if s + 1 < 20:
            w_read(s + 1); a(f"s_waitcnt vmcnt({20-s}) lgkmcnt(10)")
        else:
            a("s_waitcnt vmcnt(0) lgkmcnt(0)")
        f = WF[s & 1]
        for ct in range(5):
            cc = "0" if s == 0 else R(ACC+4*ct, 4)
            a(f"v_mfma_f32_16x16x32_bf16 {R(ACC+4*ct,4)}, {R(f+4*ct,4)}, {R(XF+4*s,4)}, {cc}")
    stamp(17)
    lds_poll(26, 28, 1)
    for ct in range(5):
        a(f"ds_read_b128 {R(AF+4*ct,4)}, v{24 + (ct&1)} offset:{512*ct}")
    a("v_and_b32 v29, 1, v19"); a("v_xor_b32 v29, v29, v6")
    a(f"s_cmp_lt_u32 s{sR}, 16"); a("s_cselect_b32 s6, 1, 0"); a("v_and_b32 v30, s6, v14"); a("v_or_b32 v29, v29, v30")
    a("v_lshrrev_b32 v30, 2, v19"); a("v_lshl_add_u32 v30, v29, 3, v30")
    a("v_lshrrev_b32 v31, 16, v20"); a("v_bfe_u32 v29, v19, 1, 1"); a("v_lshlrev_b32 v29, 4, v29"); a("v_lshlrev_b32 v31, v29, v31")
    a("v_mov_b32 v29, 0")
    for i in range(4):
        a(f"v_cmp_eq_u32 vcc, {i}, v30"); a("s_nop 1"); a(f"v_cndmask_b32 v{32+i}, v29, v31, vcc")
    a(f"s_mul_i32 s6, s{sJ}, 160")
    a("s_waitcnt lgkmcnt(0)")
    for ct in range(5):
        a(f"v_mfma_f32_16x16x32_bf16 {R(ACC+4*ct,4)}, {R(AF+4*ct,4)}, v[32:35], {R(ACC+4*ct,4)}")
    a("s_nop 3")
    for i in range(10): a(f"v_cvt_pk_bf16_f32 v{XF+i}, v{ACC+2*i}, v{ACC+2*i+1}")
    a(f"buffer_store_dwordx4 {R(XF,4)}, v27, {SR(OUT_,4)}, s6 offen")
    a(f"buffer_store_dwordx4 {R(XF+4,4)}, v27, {SR(OUT_,4)}, s6 offen offset:16")
    a(f"buffer_store_dwordx2 {R(XF+8,2)}, v27, {SR(OUT_,4)}, s6 offen offset:32")
    stamp(18)
    stamp_flush(20)
    a.label("K_END")
    a("s_endpgm")
    a.raw(".fill 2048, 4, 0xbf800000")

def main(out):
    ref = open(f"cdna_kernels/{NAME}.s.ref").read().splitlines()
    hdr = [l for l in ref if l.startswith(';') and '@launch' not in l]
    hdr += [f"; @launch grid=(256,1,1) block=(512,1,1) lds={LDS_SIZE}"]
    a.raw('.amdgcn_target "amdgcn-amd-amdhsa--gfx950"'); a.raw(".text")
    kernel()
    errs = hazard.check(hdr + a.L)
    for e in errs: print("HAZARD", e)
    vg = 256 if STAMP else 224
    txt = "\n".join(hdr + a.L) + f'''
.section .rodata,"a"
.p2align 6
.amdhsa_kernel {NAME}_kernel
  .amdhsa_next_free_vgpr {vg}
  .amdhsa_next_free_sgpr 102
  .amdhsa_accum_offset {vg}
  .amdhsa_group_segment_fixed_size 0
  .amdhsa_kernarg_size 128
  .amdhsa_user_sgpr_count 2
  .amdhsa_user_sgpr_kernarg_segment_ptr 1
  .amdhsa_system_sgpr_workgroup_id_x 1
.end_amdhsa_kernel
'''
    open(out, "w").write(txt)

if __name__ == "__main__":
    if len(sys.argv) > 2 and sys.argv[2] == "stamp": STAMP = True
    OPT.update(sys.argv[3:])
    main(sys.argv[1] if len(sys.argv) > 1 else f"cdna_kernels/{NAME}.s")
```
